```python
import torch

def _softmax(x, axis=-1):
    return torch.softmax(x, dim=axis)

def _gelu(x):
    return torch.nn.functional.gelu(x, approximate='tanh')

def _silu(x):
    return torch.nn.functional.silu(x)

def _sigmoid(x):
    return torch.sigmoid(x)

def _layernorm(x, axis=-1, eps=1e-05):
    m = x.mean(dim=axis, keepdim=True)
    v = x.var(dim=axis, keepdim=True, unbiased=False)
    return (x - m) / torch.sqrt(v + eps)

def _scatter_add(tgt, idx, src, axis=0):
    return tgt.clone().index_add_(axis, idx, src)

def _segment_sum(src, seg, n):
    out = torch.zeros((n,) + src.shape[1:], dtype=src.dtype)
    return out.index_add_(0, seg, src)

def _pad(x, pw):
    flat = tuple((v for pair in reversed(pw) for v in pair))
    return torch.nn.functional.pad(x, flat)
kernel_name = 'adaLN_cond__ssm_conv_s4__mixer_s_mlp__prompt'

def setup_inputs():

    _w = lambda a: (lambda t: t.to(torch.bfloat16) if t.is_floating_point() else t)(torch.as_tensor(a))

    def _A_setup():
        B, L, D, N = (1, 2048, 640, 128)
        A_re = -(lambda _x: torch.exp(torch.as_tensor(_x)))((lambda *s: torch.randn(*s, dtype=torch.bfloat16) * 3.2)(D, N))
        A_im = torch.pi * (lambda *s: torch.randn(*s, dtype=torch.bfloat16) * 0.1)(D, N)
        B_re = (lambda *s: torch.randn(*s, dtype=torch.bfloat16) * 0.2)(D, N)
        B_im = (lambda *s: torch.randn(*s, dtype=torch.bfloat16) * 0.2)(D, N)
        C_re = (lambda *s: torch.randn(*s, dtype=torch.bfloat16) * 0.2)(D, N)
        C_im = (lambda *s: torch.randn(*s, dtype=torch.bfloat16) * 0.2)(D, N)
        log_dt = (lambda *s: torch.randn(*s, dtype=torch.bfloat16) * 0.1)(D) * 0.5 - 4.0
        Dskip = (lambda *s: torch.randn(*s, dtype=torch.bfloat16) * 0.1)(D)
        return {'u': _w((lambda *s: torch.randn(*s, dtype=torch.bfloat16) * 0.05)(B, L, D)), 'A_re': _w(A_re), 'A_im': _w(A_im), 'B_re': _w(B_re), 'B_im': _w(B_im), 'C_re': _w(C_re), 'C_im': _w(C_im), 'log_dt': _w(log_dt), 'Dskip': _w(Dskip)}
    _A_in = _A_setup()

    def _B_setup():
        B, S, D, F = (1, 2048, 640, 1728)
        return {'x': _w((lambda *s: torch.randn(*s, dtype=torch.bfloat16) * 0.05)(B, S, D)), 'w1': _w((lambda *s: torch.randn(*s, dtype=torch.bfloat16) * 3.2)(D, D) * D ** (-0.5)), 'w2': _w((lambda *s: torch.randn(*s, dtype=torch.bfloat16) * 3.2)(D, D) * D ** (-0.5)), 'w3': _w((lambda *s: torch.randn(*s, dtype=torch.bfloat16) * 3.2)(D, F) * D ** (-0.5)), 'w4': _w((lambda *s: torch.randn(*s, dtype=torch.bfloat16) * 3.2)(F, D) * F ** (-0.5))}
    _B_in = _B_setup()
    return {'A_u': _A_in['u'], 'A_A_re': _A_in['A_re'], 'A_A_im': _A_in['A_im'], 'A_B_re': _A_in['B_re'], 'A_B_im': _A_in['B_im'], 'A_C_re': _A_in['C_re'], 'A_C_im': _A_in['C_im'], 'A_log_dt': _A_in['log_dt'], 'A_Dskip': _A_in['Dskip'], 'B_x': _B_in['x'], 'B_w1': _B_in['w1'], 'B_w2': _B_in['w2'], 'B_w3': _B_in['w3'], 'B_w4': _B_in['w4'], 'c': _w((lambda *s: torch.randn(*s, dtype=torch.bfloat16) * 0.1)(1, 640) * 8.0), 'w_mod': _w((lambda *s: torch.randn(*s, dtype=torch.bfloat16) * 0.1)(640, 6 * 640) * 640 ** (-0.5) * 8.0)}

def reference(A_u, A_A_re, A_A_im, A_B_re, A_B_im, A_C_re, A_C_im, A_log_dt, A_Dskip, B_x, B_w1, B_w2, B_w3, B_w4, c, w_mod):

    def _A_ref(u, A_re, A_im, B_re, B_im, C_re, C_im, log_dt, Dskip):
        Bsz, L, D = u.shape
        dt = torch.exp(log_dt)[:, None]
        A = A_re + 1j * A_im
        Bc = B_re + 1j * B_im
        Cc = C_re + 1j * C_im
        logdA = dt * A
        dB = dt * Bc
        l = (lambda x, dt: x.to(dt))(torch.arange(L), A_re.dtype)
        P = torch.exp(logdA[:, :, None] * l[None, None, :])
        K = torch.einsum('dn,dnl,dn->dl', Cc, P, dB).real
        L2 = 2 * L
        Kp = _pad(K, ((0, 0), (0, L)))
        up = (lambda x, *d: x.permute(*d))(u, 0, 2, 1)
        up = _pad(up, ((0, 0), (0, 0), (0, L)))
        Kf = (lambda x, axes=(-2, -1): torch.fft.rfft2(x.float(), dim=axes))(Kp[:, None, :], axes=(-2, -1))
        Uf = (lambda x, axes=(-2, -1): torch.fft.rfft2(x.float(), dim=axes))(up[:, :, None, :], axes=(-2, -1))
        Yf = Uf * Kf[None, :, :, :]
        y = (lambda x, s, axes=(-2, -1): torch.fft.irfft2(x, s=s, dim=axes).to(torch.bfloat16))(Yf, (1, L2), axes=(-2, -1))[:, :, 0, :L]
        y = (lambda x, *d: x.permute(*d))(y, 0, 2, 1) + u * Dskip[None, None, :]
        return y

    def _B_ref(x, w1, w2, w3, w4):
        B, S, D = x.shape
        h = _gelu(_layernorm(x, axis=-1) @ w1)
        c = D // 4
        g0 = _pad(h[:, :, 0 * c:1 * c], ((0, 0), (1, 0), (0, 0)))[:, :S, :]
        g1 = _pad(h[:, :, 1 * c:2 * c], ((0, 0), (0, 1), (0, 0)))[:, 1:, :]
        g2 = _pad(h[:, :, 2 * c:3 * c], ((0, 0), (2, 0), (0, 0)))[:, :S, :]
        g3 = _pad(h[:, :, 3 * c:], ((0, 0), (0, 2), (0, 0)))[:, 2:, :]
        hs = torch.concatenate([g0, g1, g2, g3], axis=-1) @ w2
        x1 = x + hs
        h2 = _gelu(_layernorm(x1, axis=-1) @ w3) @ w4
        return x1 + h2
    x = A_u
    mod = (_silu(c) @ w_mod).reshape(c.shape[0], 6, 1, -1)
    sa, ca, ga, sb, cb, gb = (mod[:, 0].clone(), mod[:, 1].clone(), mod[:, 2].clone(), mod[:, 3].clone(), mod[:, 4].clone(), mod[:, 5].clone())
    h = _layernorm(x, axis=-1) * (1 + ca) + sa
    x = x + ga * _A_ref(h, A_A_re, A_A_im, A_B_re, A_B_im, A_C_re, A_C_im, A_log_dt, A_Dskip)
    h = _layernorm(x, axis=-1) * (1 + cb) + sb
    x = x + gb * _B_ref(h, B_w1, B_w2, B_w3, B_w4)
    return x
```

```python
import re
class Asm:
    def __init__(s): s.L=[]; s.uid=0
    def __call__(s, txt):
        for ln in txt.split('\n'):
            ln=ln.strip()
            if ln: s.L.append(ln)
    def lab(s, p='L'):
        s.uid+=1; return f"{p}_{s.uid}"
def v(a,n=1): return f"v{a}" if n==1 else f"v[{a}:{a+n-1}]"
def sr(a,n=1): return f"s{a}" if n==1 else f"s[{a}:{a+n-1}]"
RE=re.compile(r'\b([vas])(\d+)\b|\b([vas])\[(\d+):(\d+)\]')
def regs(op):
    out=set()
    for m in RE.finditer(op):
        if m.group(1): out.add((m.group(1),int(m.group(2))))
        else:
            for i in range(int(m.group(4)),int(m.group(5))+1): out.add((m.group(3),i))
    if re.search(r'\bvcc\b',op): out|={('s',106),('s',107)}
    if re.search(r'\bm0\b',op): out.add(('s',124))
    return out
TRANS=('v_exp_f32','v_log_f32','v_rcp_f32','v_rsq_f32','v_sqrt_f32','v_sin_f32','v_cos_f32')
def parse(ln):
    m=re.match(r'(\S+)\s*(.*)',ln); op=m.group(1); rest=m.group(2).split(';')[0]
    ops=[x.strip() for x in re.split(r',(?![^\[]*\])',rest)] if rest.strip() else []
    d=dict(op=op,w=set(),r=set(),kind='other')
    allr=set()
    for o in ops: allr|=regs(o)
    if op.startswith('v_mfma'):
        d['kind']='mfma'; d['w']=regs(ops[0]); d['r']=regs(ops[1])|regs(ops[2])|regs(ops[3]); d['c']=regs(ops[3]); d['p']=8 if '32x32' in op else 4
    elif op.startswith('v_cmp'):
        d['kind']='valu'; d['w']=regs(ops[0]) if not op.endswith('_e32') or True else set(); d['r']=set().union(*[regs(o) for o in ops[1:]])
        if op.startswith('v_cmpx'): d['w']|={('s',126)}
    elif op.startswith('v_'):
        d['kind']='valu'; d['w']=regs(ops[0]); d['r']=set().union(*[regs(o) for o in ops[1:]]) if len(ops)>1 else set()
        if op.startswith(('v_fmac','v_dot2c','v_writelane')) : d['r']|=d['w']
        if op.startswith('v_permlane') and 'swap' in op: d['w']|=regs(ops[1]); d['r']|=regs(ops[0])
        if op.startswith(('v_cndmask',)) and len(ops)==3: d['r']|={('s',106),('s',107)}
        if op.startswith(('v_add_co','v_addc_co','v_sub_co')): d['w']|=regs(ops[1])
        if 'dst_sel' in ln and 'UNUSED_PRESERVE' in ln: d['r']|=d['w']
    elif op.startswith(('buffer_','global_','ds_')):
        d['kind']='mem'
        isload=('load' in op or 'read' in op) and not re.search(r'\blds\b',rest) and '_lds_' not in op
        if isload: d['w']=regs(ops[0]); d['r']=set().union(*[regs(o) for o in ops[1:]])
        else: d['r']=allr
        if re.search(r'\blds\b',rest) or '_lds_' in op: d['r']=d['r']|{('s',124)}; d['dma']=1
        if ('store' in op and ('x4' in op or 'x3' in op)): d['bigst']=regs(ops[0]) if op.startswith('buffer') else regs(ops[1])
    elif op.startswith('s_'):
        d['kind']='salu'
        if op in('s_nop','s_waitcnt','s_barrier','s_endpgm','s_branch') or op.startswith('s_cbranch') or op.startswith('s_cmp') or op=='s_setprio': d['r']=allr
        else: d['w']=regs(ops[0]) if ops else set(); d['r']=set().union(*[regs(o) for o in ops[1:]]) if len(ops)>1 else set()
        if op=='s_nop': d['n']=int(ops[0])+1
    return d
def need(p,c):
    n=0; pw=p['w']; cr=c['r']; cw=c['w']
    vw={x for x in pw if x[0] in 'va'}; sw={x for x in pw if x[0]=='s'}
    if p['kind']=='valu':
        if vw&cr:
            if c['kind']=='mfma': n=max(n,2)
            if c['kind']=='valu':
                if p['op'].replace('_e32','').replace('_e64','') in TRANS: n=max(n,1)
                if 'dpp' in c['op'] or c.get('dpp'): n=max(n,2)
                if c['op'].startswith('v_permlane'): n=max(n,2)
                if c['op'].startswith(('v_readlane','v_readfirstlane')): n=max(n,1)
                if p.get('sdwa'): n=max(n,1)
        if sw&cr:
            if c['kind']=='mem': n=max(n,5)
            elif c['kind']=='valu': n=max(n,4 if c['op'].startswith(('v_readlane','v_writelane')) else 2)
        if ('s',126) in sw and c['kind'] in('valu','mfma'): n=max(n,5)
    if p['kind']=='mfma':
        D=pw
        if c['kind']=='mfma':
            if D&c['c'] and D!=c['c']: n=max(n,6 if p['p']==4 else 10)
            if D&(c['r']-c['c']) or (D&c['ab']): n=max(n,8 if p['p']==4 else 12)
        elif c['kind'] in('valu','mem'):
            if D&(cr|cw): n=max(n,8 if p['p']==4 else 12)
        if c['kind']=='valu' and p['c']&cw: n=max(n,3 if p['p']==4 else 7)
    if p.get('bigst') and c['kind']=='valu' and p['bigst']&cw: n=max(n,2)
    if p.get('bigst') and c['kind']=='mem' and p['bigst']&cw: n=max(n,1)
    if p['kind']=='salu' and ('s',124) in pw and c.get('dma'): n=max(n,1)
    if p['kind']=='salu' and ('s',126) in pw and c['kind'] in ('mfma',): n=max(n,0)
    return n
def pad(lines):
    out=[]; hist=[]
    for ln in lines:
        t=ln.split(';')[0].strip()
        if not t or t.startswith('.') :
            out.append(ln); continue
        if t.endswith(':'):
            out.append(ln); continue
        c=parse(t)
        if 'row_' in t or 'quad_perm' in t: c['dpp']=1
        if 'sdwa' in t or 'op_sel' in t: c['sdwa']=1
        if c['kind']=='mfma':
            ops=[x.strip() for x in re.split(r',(?![^\[]*\])',t.split(None,1)[1])]
            c['ab']=regs(ops[1])|regs(ops[2])
        req=0
        for p,d in hist: req=max(req,need(p,c)-d)
        if req>0:
            k=req
            while k>0:
                q=min(k,16); out.append(f"s_nop {q-1}"); k-=q
            hist=[(p,d+req) for p,d in hist]
        out.append(ln)
        adv=c.get('n',1)
        hist=[(p,d+adv) for p,d in hist if d+adv<14]
        hist.append((c,0))
    return out
import os
PROF=int(os.environ.get('PROF','0'))
class Prof:
    def __init__(s,a,base=56): s.a=a; s.n=0; s.base=base
    def init(s):
        if PROF: s.a("s_load_dwordx2 s[96:97], s[0:1], 136\ns_mov_b32 s98, 256\ns_mov_b32 s99, 0x20000")
    def stamp(s):
        if PROF:
            s.a(f"s_memtime s[{s.base+2*s.n}:{s.base+2*s.n+1}]"); s.n+=1
    def dump(s,wg,slot0,wavesel=None):
        if not PROF: return
        a=s.a; l=a.lab()
        a(f"s_waitcnt lgkmcnt(0)\ns_cmp_lg_u32 s2, {wg}\ns_cbranch_scc1 {l}\nv_readfirstlane_b32 s54, v0\ns_lshr_b32 s54, s54, 6\ns_cmp_lg_u32 s54, {wavesel or 0}\ns_cbranch_scc1 {l}")
        for i in range(1,s.n):
            a(f"s_sub_u32 s{s.base+2*i}, s{s.base+2*i}, s{s.base}\nv_mov_b32 v250, s{s.base+2*i}\nv_mov_b32 v251, 0\nbuffer_store_dword v250, v251, s[96:99], 0 offen offset:{4*(slot0+i-1)}")
        a(f"s_waitcnt vmcnt(0)\n{l}:")
```

```python
from asmlib import *
MODP=0x0; VEC=0x20000; FLAGS=0x28000; STAT=0x30000; PSTAT=0x40000
XT=0x100000; XNT=0x400000; KR=0x700000; X2=0xA00000; Y2=0xD00000; GA=0x1000000; X1=0x1300000; H3=0x1600000
W1S=0x1D00000; W2S=0x1E00000; W3S=0x1F00000; W4S=0x2200000
V_GW=VEC; V_S1=VEC+2560; V_C1=VEC+5120; V_C3=VEC+7680
V_G=VEC+0x4000; V_SB=V_G+2560; V_GB=V_G+5120; V_GAF=VEC+0x6000; V_SBAF=V_GAF+2560
WSZ=0x10000000
KOFF=dict(u=0,Are=8,Aim=16,Bre=24,Bim=32,Cre=40,Cim=48,ldt=56,Dsk=64,w1=80,w2=88,w3=96,w4=104,c=112,wmod=120,out=128,dbg=136,ws=144)
def srd(a,s,name,size):
    a(f"s_load_dwordx2 s[{s}:{s+1}], s[0:1], {KOFF[name]}\ns_mov_b32 s{s+2}, {size}\ns_mov_b32 s{s+3}, 0x20000")
def dppsum16(a,r):
    for k in (8,4,2,1): a(f"v_add_f32_dpp v{r}, v{r}, v{r} row_ror:{k} row_mask:0xf bank_mask:0xf")
def unpack(a,d0,d1,s):
    a(f"v_lshlrev_b32 v{d0}, 16, v{s}\nv_and_b32 v{d1}, 0xffff0000, v{s}")
def bfround(a,r):
    a(f"v_cvt_pk_bf16_f32 v{r}, v{r}, v{r}\nv_lshlrev_b32 v{r}, 16, v{r}")

def k1_transposer(a):
    RS=1312
    srd(a,8,'u',2621440); srd(a,12,'ws',WSZ)
    a("v_and_b32 v1, 63, v0\nv_lshrrev_b32 v2, 6, v0\nv_and_b32 v3, 15, v0\nv_bfe_u32 v4, v0, 4, 2")
    a("v_lshlrev_b32 v5, 3, v2\nv_add_u32 v5, v5, v4")
    a("s_lshl_b32 s4, s3, 5\ns_mul_i32 s4, s4, 1280")
    a("v_mul_u32_u24 v6, 1280, v5\nv_lshlrev_b32 v7, 4, v3\nv_add_u32 v6, v6, v7")
    a(f"v_mul_u32_u24 v8, {RS}, v5\nv_add_u32 v8, v8, v7")
    a("s_waitcnt lgkmcnt(0)")
    for p in range(2):
        for q in range(5):
            a(f"buffer_load_dwordx4 v[{16+20*p+4*q}:{19+20*p+4*q}], v6, s[8:11], s4 offen offset:{p*0+q*256}" if p==0 else
              f"buffer_load_dwordx4 v[{16+20*p+4*q}:{19+20*p+4*q}], v9, s[8:11], s4 offen offset:{q*256}")
        if p==0: a("v_add_u32 v9, 5120, v6")
    for p in range(2):
        a(f"s_waitcnt vmcnt({5*(1-p)})")
        for q in range(5):
            a(f"ds_write_b128 v8, v[{16+20*p+4*q}:{19+20*p+4*q}] offset:{p*4*RS+q*256}")
        F=64
        for i in range(20): unpack(a,F+2*i,F+2*i+1,16+20*p+i)
        a(f"v_add_f32 v10, v{F}, v{F+1}")
        for i in range(2,40): a(f"v_add_f32 v10, v10, v{F+i}")
        dppsum16(a,10)
        a("v_mul_f32 v10, 0x3acccccd, v10")
        for i in range(40): a(f"v_sub_f32 v{F+i}, v{F+i}, v10")
        a(f"v_mul_f32 v11, v{F}, v{F}")
        for i in range(1,40): a(f"v_fmac_f32 v11, v{F+i}, v{F+i}")
        dppsum16(a,11)
        a("v_mov_b32 v12, 0x3727c5ac\nv_fmac_f32 v12, 0x3acccccd, v11\nv_rsq_f32 v12, v12\nv_mul_f32 v13, v10, v12\nv_sub_f32 v13, 0, v13")
        a(f"v_lshlrev_b32 v14, 3, v5\nds_write_b64 v14, v[12:13] offset:{32*RS+p*32}")
    a("s_waitcnt lgkmcnt(0)\ns_barrier")
    a("v_bfe_u32 v5, v0, 2, 2\nv_lshlrev_b32 v6, 3, v4\nv_add_u32 v5, v5, v6")
    a(f"v_mul_u32_u24 v5, {RS}, v5\nv_and_b32 v6, 3, v0\nv_lshlrev_b32 v6, 3, v6\nv_add_u32 v5, v5, v6")
    a("v_lshlrev_b32 v6, 5, v2\nv_add_u32 v5, v5, v6")
    a(f"v_lshlrev_b32 v6, 6, v4\nds_read_b128 v[16:19], v6 offset:{32*RS}\nds_read_b128 v[20:23], v6 offset:{32*RS+16}\nds_read_b128 v[24:27], v6 offset:{32*RS+32}\nds_read_b128 v[28:31], v6 offset:{32*RS+48}")
    a("v_lshlrev_b32 v7, 4, v2\nv_add_u32 v7, v7, v3\nv_lshlrev_b32 v7, 12, v7\nv_lshlrev_b32 v6, 4, v4\nv_add_u32 v7, v7, v6")
    a(f"s_lshl_b32 s4, s3, 6\ns_add_u32 s5, s4, {XT}\ns_add_u32 s6, s4, {XNT}")
    for i in range(10):
        R=32+4*i
        a(f"ds_read_b64_tr_b16 v[{R}:{R+1}], v5 offset:{i*128}\nds_read_b64_tr_b16 v[{R+2}:{R+3}], v5 offset:{i*128+4*RS}")
    a("s_waitcnt lgkmcnt(0)")
    for i in range(10):
        R=32+4*i; F=80+ (i%2)*12
        a(f"buffer_store_dwordx4 v[{R}:{R+3}], v7, s[12:15], s5 offen")
        for j in range(4): unpack(a,F+2*j,F+2*j+1,R+j)
        for j in range(8): a(f"v_fma_f32 v{F+j}, v{F+j}, v{16+2*j}, v{17+2*j}")
        for j in range(4): a(f"v_cvt_pk_bf16_f32 v{F+8+j}, v{F+2*j}, v{F+2*j+1}")
        a(f"buffer_store_dwordx4 v[{F+8}:{F+11}], v7, s[12:15], s6 offen")
        a(f"s_add_u32 s5, s5, {64*4096}\ns_add_u32 s6, s6, {64*4096}")
    a("s_endpgm")

def k1_gemv(a):
    srd(a,8,'wmod',640*3840*2); srd(a,12,'ws',WSZ); srd(a,16,'c',1280)
    a("s_mul_i32 s4, s3, 4370\ns_lshr_b32 s4, s4, 16\ns_mul_i32 s5, s4, 15\ns_sub_u32 s5, s3, s5")
    a("v_and_b32 v1, 63, v0\nv_lshrrev_b32 v2, 6, v0\nv_readfirstlane_b32 s6, v2")
    a("s_mul_i32 s7, s4, 80\ns_mul_i32 s6, s6, 20\ns_add_u32 s7, s7, s6")
    a("v_min_u32 v3, 19, v1\nv_add_u32 v3, s7, v3\nv_lshlrev_b32 v3, 1, v3")
    a("s_mul_i32 s20, s7, 7680\ns_lshl_b32 s21, s5, 9\ns_add_u32 s20, s20, s21")
    a("v_lshlrev_b32 v4, 3, v1\ns_waitcnt lgkmcnt(0)")
    a("buffer_load_ushort v5, v3, s[16:19], 0 offen")
    for i in range(20):
        a(f"buffer_load_dwordx2 v[{16+2*i}:{17+2*i}], v4, s[8:11], s20 offen\ns_add_u32 s20, s20, 7680")
    a("s_waitcnt vmcnt(20)\nv_lshlrev_b32 v5, 16, v5\nv_mul_f32 v6, 0xbfb8aa3b, v5\nv_exp_f32 v6, v6\nv_add_f32 v6, 1.0, v6\nv_rcp_f32 v6, v6\nv_mul_f32 v5, v5, v6")
    bfround(a,5)
    for i in range(20): a(f"v_readlane_b32 s{24+i}, v5, {i}")
    for j in range(4): a(f"v_mov_b32 v{8+j}, 0")
    for i in range(20):
        a(f"s_waitcnt vmcnt({19-i})")
        unpack(a,60,61,16+2*i); unpack(a,62,63,17+2*i)
        for j in range(4): a(f"v_fmac_f32 v{8+j}, s{24+i}, v{60+j}")
    a("v_lshlrev_b32 v6, 10, v2\nv_lshlrev_b32 v7, 4, v1\nv_add_u32 v6, v6, v7\nds_write_b128 v6, v[8:11]\ns_waitcnt lgkmcnt(0)\ns_barrier")
    a("v_lshlrev_b32 v6, 2, v0\nds_read_b32 v8, v6\nds_read_b32 v9, v6 offset:1024\nds_read_b32 v10, v6 offset:2048\nds_read_b32 v11, v6 offset:3072")
    a(f"s_mul_i32 s20, s4, {3840*4}\ns_lshl_b32 s21, s5, 10\ns_add_u32 s20, s20, s21\ns_add_u32 s20, s20, {MODP}")
    a("s_waitcnt lgkmcnt(0)\nv_add_f32 v8, v8, v9\nv_add_f32 v10, v10, v11\nv_add_f32 v8, v8, v10\nbuffer_store_dword v8, v6, s[12:15], s20 offen\ns_endpgm")

def cexp(a,dr,di,scale,AR,AI,t0,t1):
    import struct
    sc="0x%08x"%struct.unpack('<I',struct.pack('<f',float(scale)))[0]
    a(f"v_mul_f32 v{t0}, {sc}, v{AR}\nv_mul_f32 v{t1}, {sc}, v{AI}\nv_exp_f32 v{t0}, v{t0}\nv_fract_f32 v{t1}, v{t1}\nv_cos_f32 v{dr}, v{t1}\nv_sin_f32 v{di}, v{t1}\nv_mul_f32 v{dr}, v{dr}, v{t0}\nv_mul_f32 v{di}, v{di}, v{t0}")
def cmul(a,d,x,y,t):
    a(f"v_pk_mul_f32 v[{t}:{t+1}], v[{x}:{x+1}], v[{y}:{y+1}] op_sel:[0,0] op_sel_hi:[0,1]")
    a(f"v_pk_fma_f32 v[{d}:{d+1}], v[{x}:{x+1}], v[{y+2}:{y+3}], v[{t}:{t+1}] op_sel:[1,0,0] op_sel_hi:[1,1,1]")
def k1_kgen(a):
    ES=272; EB=0; FB=33*ES; WS=FB+32*ES
    for i,(nm) in enumerate(['Are','Aim','Bre','Bim','Cre','Cim']): srd(a,8+4*i,nm,640*128*2)
    srd(a,32,'ldt',1280); srd(a,36,'ws',WSZ)
    pf=Prof(a); pf.init(); pf.stamp()
    a("v_and_b32 v1, 63, v0\nv_lshrrev_b32 v2, 6, v0\nv_readfirstlane_b32 s4, v2")
    a("s_lshr_b32 s5, s4, 1\ns_lshl_b32 s6, s2, 1\ns_add_u32 s5, s5, s6\ns_and_b32 s6, s4, 1")
    a("s_lshl_b32 s7, s5, 8\ns_lshl_b32 s40, s6, 7\ns_add_u32 s7, s7, s40\nv_lshlrev_b32 v3, 1, v1\nv_add_u32 v3, s7, v3")
    a("s_lshl_b32 s41, s5, 1\nv_mov_b32 v4, s41\ns_waitcnt lgkmcnt(0)")
    for i in range(6): a(f"buffer_load_ushort v{8+i}, v3, s[{8+4*i}:{11+4*i}], 0 offen")
    a("buffer_load_ushort v14, v4, s[32:35], 0 offen")
    a(f"s_mul_i32 s42, s4, {WS}\nv_lshlrev_b32 v5, 2, v1\nv_add_u32 v5, s42, v5")
    a("v_and_b32 v6, 15, v0\nv_bfe_u32 v7, v0, 4, 2")
    a("v_lshlrev_b32 v15, 4, v7\nv_add_u32 v15, s42, v15")
    for ct in range(2):
        a(f"v_add_u32 v16, {16*ct}, v6\nv_cvt_f32_u32 v17, v16")
        for sg in range(4):
            r=100+2*sg+ct
            if sg==0: a(f"v_mul_u32_u24 v{r}, {ES}, v16")
            else:
                a(f"v_mul_f32 v18, {['','0.5','0x3e800000','0x3e000000'][sg]}, v17\nv_rndne_f32 v18, v18\nv_cvt_u32_f32 v18, v18\nv_mul_u32_u24 v{r}, {ES<<sg}, v18")
            a(f"v_add_u32 v{r}, v{r}, v15")
    a(f"v_mul_u32_u24 v108, {ES}, v6\nv_add_u32 v108, v108, v15\nv_add_u32 v108, {FB}, v108")
    a("s_waitcnt vmcnt(0)"); pf.stamp()
    for i in range(7): a(f"v_lshlrev_b32 v{8+i}, 16, v{8+i}")
    a("v_mul_f32 v14, 0x3fb8aa3b, v14\nv_exp_f32 v14, v14"); bfround(a,14)
    a("v_mul_f32 v8, v8, v14\nv_mul_f32 v9, v9, v14\nv_mul_f32 v10, v10, v14\nv_mul_f32 v11, v11, v14")
    a("v_mul_f32 v8, 0x3fb8aa3b, v8\nv_mul_f32 v9, 0x3e22f983, v9")
    a("v_mul_f32 v20, v12, v10\nv_mul_f32 v21, v12, v11\nv_fma_f32 v20, -v13, v11, v20\nv_fma_f32 v21, v13, v10, v21\nv_sub_f32 v21, 0, v21")
    cexp(a,24,25,1,8,9,16,17); a("v_sub_f32 v26, 0, v25\nv_mov_b32 v27, v24")
    cexp(a,28,29,32,8,9,16,17); a("v_sub_f32 v29, 0, v29\nv_sub_f32 v30, 0, v29\nv_mov_b32 v31, v28")
    a("v_mov_b32 v32, 1.0\nv_mov_b32 v33, 0")
    cexp(a,34,35,16,8,9,16,17)
    a("v_mov_b32 v36, v20\nv_mov_b32 v37, v21")
    for k,(sc) in enumerate([512,1024,1536]):
        cexp(a,44,45,sc,8,9,16,17); a("v_sub_f32 v45, 0, v45\nv_sub_f32 v46, 0, v45\nv_mov_b32 v47, v44")
        cmul(a,38+2*k,20,44,16)
    pf.stamp()
    def step(ch,mult,row,base,t,last):
        a(f"v_cvt_pk_bf16_f32 v{t}, v{ch}, v{ch+1}")
        if not last: cmul(a,ch,ch,mult,t+2)
        a(f"ds_write_b32 v5, v{t} offset:{base+row*ES}")
    for i in range(17):
        if i<16: step(32,24,i,EB,48,i==15)
        step(34,24,16+i,EB,52,i==16)
        if i<16:
            step(36,28,i,FB,56,i==15); step(38,28,16+i,FB,60,i==15)
    a("s_waitcnt lgkmcnt(0)")
    def frg(dst,addr,st,off=0): a(f"ds_read_b128 v[{dst}:{dst+3}], v{addr} offset:{off+64*st}")
    pf.stamp()
    for r in range(112,152): a(f"v_mov_b32 v{r}, 0")
    def mf(acc,A,B): a(f"v_mfma_f32_16x16x32_bf16 v[{acc}:{acc+3}], v[{A}:{A+3}], v[{B}:{B+3}], v[{acc}:{acc+3}]")
    for st in range(4): frg(152+4*st,108,st); frg(168+4*st,108,st,16*ES)
    for idx,(sg,ct) in enumerate([(0,0),(0,1),(1,0),(1,1),(2,0),(2,1)]):
        R=184+16*(idx%2)
        for st in range(4): frg(R+4*st,100+2*sg+ct,st)
        a("s_waitcnt lgkmcnt(0)")
        acc=[112,116,120,124,128,132][idx]; Fb=152 if sg<2 else 168
        for st in range(4): mf(acc,R+4*st,Fb+4*st)
    pf.stamp()
    for i in range(16):
        step(40,28,i,FB,56,i==15); step(42,28,16+i,FB,60,i==15)
    a("s_waitcnt lgkmcnt(0)")
    for st in range(4): frg(152+4*st,108,st); frg(168+4*st,108,st,16*ES)
    for ct in range(2):
        R=184+16*ct
        for st in range(4): frg(R+4*st,106+ct,st)
    a("s_waitcnt lgkmcnt(0)")
    for ct in range(2):
        for st in range(4):
            mf(136+4*ct,184+16*ct+4*st,152+4*st); mf(144+4*ct,184+16*ct+4*st,168+4*st)
    pf.stamp()
    a("v_cmp_gt_u32 vcc, 8, v6")
    for j in range(8): a(f"v_cndmask_b32 v{120+j}, v{120+j}, v{112+j}, vcc")
    a(f"v_lshlrev_b32 v16, 4, v1\nv_add_u32 v16, s42, v16\nv_add_u32 v16, {FB}, v16")
    a(f"s_xor_b32 s43, s4, 1\ns_mul_i32 s43, s43, {WS}\nv_lshlrev_b32 v17, 4, v1\nv_add_u32 v17, s43, v17\nv_add_u32 v17, {FB}, v17")
    l1,l2=a.lab(),a.lab()
    a(f"s_cmp_eq_u32 s6, 0\ns_cbranch_scc1 {l1}")
    for j in range(16): a(f"v_mov_b32 v{152+j}, v{120+j}\nv_mov_b32 v{120+j}, v{136+j}")
    a(f"s_branch {l2}\n{l1}:")
    for j in range(16): a(f"v_mov_b32 v{152+j}, v{136+j}")
    a(f"{l2}:")
    for q in range(4): a(f"ds_write_b128 v16, v[{152+4*q}:{155+4*q}] offset:{1024*q}")
    a("s_waitcnt lgkmcnt(0)\ns_barrier")
    for q in range(4): a(f"ds_read_b128 v[{152+4*q}:{155+4*q}], v17 offset:{1024*q}")
    a("s_mul_i32 s44, s5, 4224\n" f"s_add_u32 s44, s44, {KR}\ns_lshl_b32 s45, s6, 11")
    a("v_lshlrev_b32 v18, 6, v6\nv_lshlrev_b32 v19, 3, v7\nv_add_u32 v18, v18, v19\nv_add_u32 v18, s45, v18\nv_sub_u32 v18, 4088, v18")
    a("v_subrev_u32 v19, 1056, v18")
    a("s_waitcnt lgkmcnt(0)")
    for j in range(16): a(f"v_add_f32 v{120+j}, v{120+j}, v{152+j}")
    for tt in range(2):
        for ct in range(2):
            R=120+8*tt+4*ct
            a(f"v_cvt_pk_bf16_f32 v{152+2*(2*tt+ct)}, v{R+3}, v{R+2}\nv_cvt_pk_bf16_f32 v{153+2*(2*tt+ct)}, v{R+1}, v{R}")
            off=1056-1024*tt-32*ct
            a(f"buffer_store_dwordx2 v[{152+2*(2*tt+ct)}:{153+2*(2*tt+ct)}], v19, s[36:39], s44 offen offset:{off}")
    a("v_lshlrev_b32 v20, 3, v6\nv_add_u32 v20, 4096, v20\nv_mov_b32 v22, 0\nv_mov_b32 v23, 0\nbuffer_store_dwordx2 v[22:23], v20, s[36:39], s44 offen")
    pf.stamp(); pf.dump(5,0)
    a("s_endpgm")
    return WS*4

def k1(a,name):
    a(f".p2align 8\n.type {name},@function\n{name}:")
    lt,lg,le=a.lab(),a.lab(),a.lab()
    a(f"s_cmp_ge_u32 s2, 320\ns_cbranch_scc1 {lt}")
    lds=k1_kgen(a)
    a(f"{lt}:\ns_cmp_ge_u32 s2, 384\ns_cbranch_scc1 {lg}\ns_sub_u32 s3, s2, 320")
    k1_transposer(a)
    a(f"{lg}:\ns_cmp_ge_u32 s2, 504\ns_cbranch_scc1 {le}\ns_sub_u32 s3, s2, 384")
    k1_gemv(a)
    a(f"{le}:\ns_endpgm")
    return lds
```

```python
from asmlib import *
from k1 import *
def modsum(a,dst,voff,srdws,tmp0):
    a(f"v_add_f32_dpp v{dst}, v{dst}, v{dst} quad_perm:[1,0,3,2] row_mask:0xf bank_mask:0xf")
    a(f"v_add_f32_dpp v{dst}, v{dst}, v{dst} quad_perm:[2,3,0,1] row_mask:0xf bank_mask:0xf")
    a(f"v_add_f32_dpp v{dst}, v{dst}, v{dst} row_half_mirror row_mask:0xf bank_mask:0xf")
def k2_conv(a):
    CS=4160; HBO=4*CS; WS=HBO+4608; TB=4*WS; TS=4160
    srd(a,8,'ws',WSZ); srd(a,12,'Dsk',1280)
    pf=Prof(a); pf.init(); pf.stamp()
    a("v_and_b32 v1, 63, v0\nv_lshrrev_b32 v2, 6, v0\nv_readfirstlane_b32 s4, v2")
    a(f"s_lshl_b32 s5, s2, 2\ns_add_u32 s5, s5, s4\ns_mul_i32 s6, s4, {WS}")
    a(f"s_mul_i32 s7, s5, 4224\ns_add_u32 s7, s7, {KR}")
    a("v_lshlrev_b32 v3, 4, v1\ns_waitcnt lgkmcnt(0)")
    for c in range(4):
        for i in range(4):
            a(f"s_add_u32 m0, s6, {c*CS+i*1024}\ns_add_u32 s16, s7, {2*c+1024*i}\nbuffer_load_dwordx4 v3, s[8:11], s16 offen lds")
    a(f"s_lshl_b32 s17, s5, 12\ns_add_u32 s18, s17, {XNT}\ns_add_u32 s17, s17, {XT}")
    for i in range(4): a(f"buffer_load_dwordx4 v[{16+4*i}:{19+4*i}], v3, s[8:11], s18 offen offset:{1024*i}")
    a("v_and_b32 v4, 15, v0\nv_bfe_u32 v5, v0, 4, 2\nv_lshlrev_b32 v6, 5, v4\nv_lshlrev_b32 v7, 3, v5\nv_add_u32 v6, v6, v7")
    for T in range(8): a(f"buffer_load_dwordx2 v[{32+2*T}:{33+2*T}], v6, s[8:11], s17 offen offset:{512*T}")
    a("v_bfe_u32 v7, v0, 3, 2\nv_and_b32 v8, 7, v0\nv_cmp_eq_u32 vcc, 3, v7\nv_cndmask_b32 v7, v7, 4, vcc")
    a(f"v_mul_u32_u24 v7, 2560, v7\nv_mul_u32_u24 v8, {3840*4}, v8\nv_add_u32 v7, v7, v8\ns_lshl_b32 s19, s5, 2\ns_add_u32 s19, s19, {MODP}")
    a("buffer_load_dword v9, v7, s[8:11], s19 offen\ns_lshl_b32 s20, s5, 1\nv_mov_b32 v10, s20\nbuffer_load_ushort v11, v10, s[12:15], 0 offen")
    a(f"v_mov_b32 v12, 0\nv_mov_b32 v13, 0\nv_mul_u32_u24 v10, {CS}, v5\nv_lshlrev_b32 v14, 2, v4\nv_add_u32 v10, v10, v14\nv_add_u32 v10, s6, v10\nds_write_b32 v10, v12 offset:4096")
    a(f"v_lshlrev_b32 v10, 3, v1\nv_add_u32 v10, s6, v10\nds_write_b64 v10, v[12:13] offset:{HBO}")
    a("s_waitcnt vmcnt(0)"); pf.stamp()
    modsum(a,9,7,8,0)
    bfround(a,9)
    a("v_readlane_b32 s24, v9, 0\nv_readlane_b32 s25, v9, 8\nv_readlane_b32 s26, v9, 16\nv_readlane_b32 s27, v9, 24")
    a("v_lshlrev_b32 v11, 16, v11\nv_readfirstlane_b32 s28, v11")
    a("v_add_f32 v12, 1.0, s25"); bfround(a,12); a("v_add_f32 v13, 1.0, s27"); bfround(a,13)
    a("v_readfirstlane_b32 s25, v12\nv_readfirstlane_b32 s27, v13")
    a(f"v_add_u32 v10, s6, v3\nv_mov_b32 v14, s24")
    for i in range(4):
        for j in range(4):
            unpack(a,48+2*j,49+2*j,16+4*i+j)
        for j in range(8): a(f"v_fma_f32 v{48+j}, v{48+j}, s25, v14")
        for j in range(4): a(f"v_cvt_pk_bf16_f32 v{56+4*(i%2)+j}, v{48+2*j}, v{49+2*j}")
        a(f"ds_write_b128 v10, v[{56+4*(i%2)}:{59+4*(i%2)}] offset:{HBO+512+1024*i}")
    a(f"v_and_b32 v7, 3, v0\nv_sub_u32 v7, 3, v7\nv_mul_u32_u24 v7, {CS}, v7\nv_bfe_u32 v8, v0, 2, 2\nv_lshlrev_b32 v8, 3, v8\nv_sub_u32 v7, v7, v8")
    a(f"v_lshlrev_b32 v8, 4, v5\nv_add_u32 v7, v7, v8\nv_add_u32 v7, {2*2028-4032}, v7\nv_add_u32 v7, s6, v7\nv_add_u32 v8, 2048, v7")
    a(f"v_lshlrev_b32 v9, 5, v4\nv_lshlrev_b32 v10, 4, v5\nv_add_u32 v9, v9, v10\nv_add_u32 v9, s6, v9\nv_add_u32 v9, {HBO}, v9")
    ACC=64
    for r in range(32): a(f"v_mov_b32 v{ACC+r}, 0")
    a("s_waitcnt lgkmcnt(0)")
    def loads(i0,B):
        out=[]
        for u in range(8):
            k=504-8*i0-64*u
            base,kk=(7,k) if k<256 else (8,k-256)
            out.append(f"ds_read2_b64 v[{B+4*u}:{B+4*u+3}], v{base} offset0:{kk} offset1:{kk+1}")
            out.append(f"ds_read_b128 v[{B+32+4*u}:{B+35+4*u}], v9 offset:{480+512*u-64*i0}")
        return out
    BUF=[96,160]
    pf.stamp()
    for x in loads(0,BUF[0]): a(x)
    for i0 in range(8):
        B=BUF[i0%2]
        nxt=loads(i0+1,BUF[(i0+1)%2]) if i0<7 else []
        a("s_waitcnt lgkmcnt(0)")
        mf=[(T,u) for u in range(8) for T in range(u,8)]
        for n,(T,u) in enumerate(mf):
            a(f"v_mfma_f32_16x16x32_bf16 v[{ACC+4*T}:{ACC+4*T+3}], v[{B+4*u}:{B+4*u+3}], v[{B+32+4*(T-u)}:{B+35+4*(T-u)}], v[{ACC+4*T}:{ACC+4*T+3}]")
            if n%2==1 and nxt: a(nxt.pop(0))
        for x in nxt: a(x)
    pf.stamp()
    a(f"v_add_u32 v10, s6, v6")
    for T in range(8): a(f"ds_read_b64 v[{96+2*T}:{97+2*T}], v10 offset:{HBO+512+512*T}")
    a(f"s_mul_i32 s29, s4, {TS}\ns_add_u32 s29, s29, {TB}\nv_add_u32 v11, s29, v6")
    a("s_waitcnt lgkmcnt(0)")
    for T in range(8):
        F=112
        unpack(a,F,F+1,96+2*T); unpack(a,F+2,F+3,97+2*T)
        unpack(a,F+4,F+5,32+2*T); unpack(a,F+6,F+7,33+2*T)
        for r in range(4):
            a(f"v_fma_f32 v{F+r}, v{F+r}, s28, v{ACC+4*T+r}\nv_fma_f32 v{F+4+r}, v{F+r}, s26, v{F+4+r}")
        P=120+4*(T%2)
        a(f"v_cvt_pk_bf16_f32 v{P}, v{F+4}, v{F+5}\nv_cvt_pk_bf16_f32 v{P+1}, v{F+6}, v{F+7}")
        unpack(a,F,F+1,P); unpack(a,F+2,F+3,P+1)
        for r in range(4): a(f"v_mul_f32 v{F+r}, s27, v{F+r}")
        a(f"v_cvt_pk_bf16_f32 v{P+2}, v{F}, v{F+1}\nv_cvt_pk_bf16_f32 v{P+3}, v{F+2}, v{F+3}")
        a(f"ds_write_b64 v11, v[{P}:{P+1}] offset:{512*T}\nds_write_b64 v11, v[{P+2}:{P+3}] offset:{512*T+4*TS}")
    a("s_waitcnt lgkmcnt(0)\ns_barrier")
    a(f"v_bfe_u32 v7, v0, 2, 2\nv_mul_u32_u24 v7, {TS}, v7\nv_and_b32 v8, 3, v0\nv_lshlrev_b32 v8, 3, v8\nv_add_u32 v7, v7, v8\nv_lshlrev_b32 v8, 5, v5\nv_add_u32 v7, v7, v8")
    a(f"s_lshl_b32 s29, s4, 10\ns_add_u32 s29, s29, {TB}\nv_add_u32 v7, s29, v7")
    for q in range(8):
        a(f"ds_read_b64_tr_b16 v[{16+2*q}:{17+2*q}], v7 offset:{128*q}\nds_read_b64_tr_b16 v[{32+2*q}:{33+2*q}], v7 offset:{128*q+4*TS}")
    a("v_mul_u32_u24 v8, 20480, v5\nv_lshlrev_b32 v9, 4, v4\nv_add_u32 v8, v8, v9")
    a("s_lshr_b32 s30, s2, 3\ns_lshl_b32 s30, s30, 10\ns_and_b32 s31, s2, 3\ns_lshl_b32 s31, s31, 8\ns_add_u32 s30, s30, s31\ns_bfe_u32 s31, s2, 0x10002\ns_lshl_b32 s31, s31, 3\ns_add_u32 s30, s30, s31")
    a(f"s_mul_i32 s31, s4, {32*20480}\ns_add_u32 s30, s30, s31\ns_add_u32 s31, s30, {Y2}\ns_add_u32 s30, s30, {X2}")
    a("s_waitcnt lgkmcnt(0)")
    for q in range(8):
        a(f"buffer_store_dwordx2 v[{16+2*q}:{17+2*q}], v8, s[8:11], s30 offen {F2X}\nbuffer_store_dwordx2 v[{32+2*q}:{33+2*q}], v8, s[8:11], s31 offen {F2X}")
        a(f"s_add_u32 s30, s30, {4*20480}\ns_add_u32 s31, s31, {4*20480}")
    pf.stamp(); a("s_waitcnt vmcnt(0)"); pf.stamp(); pf.dump(5,0)
    a("s_endpgm")
    return TB+8*TS

def k2_prep(a):
    srd(a,8,'ws',WSZ); srd(a,12,'w1',819200); srd(a,16,'w2',819200); srd(a,20,'w3',2211840); srd(a,24,'w4',2211840)
    VB=41984; RED=VB+4096
    a("v_and_b32 v1, 63, v0\nv_lshrrev_b32 v2, 6, v0\nv_readfirstlane_b32 s4, v2\nv_and_b32 v4, 15, v0\nv_bfe_u32 v5, v0, 4, 2")
    a("s_waitcnt lgkmcnt(0)")
    zf=a.lab()
    a(f"s_cmp_lg_u32 s3, 95\ns_cbranch_scc1 {zf}\nv_lshlrev_b32 v6, 4, v0\nv_mov_b32 v8, 0\nv_mov_b32 v9, 0\nv_mov_b32 v10, 0\nv_mov_b32 v11, 0\ns_mov_b32 s45, {FLAGS}\nbuffer_store_dwordx4 v[8:11], v6, s[8:11], s45 offen\nbuffer_store_dwordx4 v[8:11], v6, s[8:11], s45 offen offset:2048\ns_mov_b32 s45, {STAT}\n"+"".join(f"buffer_store_dwordx4 v[8:11], v6, s[8:11], s45 offen\ns_add_u32 s45, s45, 4096\n" for _ in range(16))+f"{zf}:")
    loop,done=a.lab(),a.lab()
    a(f"{loop}:")
    lw2,lw3,lw4,go=a.lab(),a.lab(),a.lab(),a.lab()
    def setsrd(r): a(f"s_mov_b32 s28, s{r}\ns_mov_b32 s29, s{r+1}\ns_mov_b32 s30, s{r+2}\ns_mov_b32 s31, s{r+3}")
    a(f"s_cmp_ge_u32 s3, 20\ns_cbranch_scc1 {lw2}")
    setsrd(12); a(f"s_mov_b32 s38, s3\ns_mov_b32 s32, 1280\ns_lshl_b32 s33, s38, 6\ns_mov_b32 s34, 20\ns_mul_i32 s35, s38, 40960\ns_add_u32 s35, s35, {W1S}\ns_mov_b32 s36, 20480\ns_mov_b32 s37, 0\ns_branch {go}")
    a(f"{lw2}:\ns_cmp_ge_u32 s3, 40\ns_cbranch_scc1 {lw3}")
    setsrd(16); a(f"s_sub_u32 s38, s3, 20\ns_mov_b32 s32, 1280\ns_lshl_b32 s33, s38, 6\ns_mov_b32 s34, 20\ns_mul_i32 s35, s38, 40960\ns_add_u32 s35, s35, {W2S}\ns_mov_b32 s36, 20480\ns_mov_b32 s37, 2\ns_branch {go}")
    a(f"{lw3}:\ns_cmp_ge_u32 s3, 94\ns_cbranch_scc1 {lw4}")
    setsrd(20); a(f"s_sub_u32 s38, s3, 40\ns_mov_b32 s32, 3456\ns_lshl_b32 s33, s38, 6\ns_mov_b32 s34, 20\ns_mul_i32 s35, s38, 40960\ns_add_u32 s35, s35, {W3S}\ns_mov_b32 s36, 20480\ns_mov_b32 s37, 1\ns_branch {go}")
    a(f"{lw4}:")
    setsrd(24); a("s_sub_u32 s39, s3, 94\ns_mul_i32 s38, s39, 21846\ns_lshr_b32 s38, s38, 16\ns_mul_i32 s40, s38, 3\ns_sub_u32 s39, s39, s40")
    a(f"s_mov_b32 s32, 1280\ns_lshl_b32 s33, s38, 6\ns_mul_i32 s40, s39, {576*1280}\ns_add_u32 s33, s33, s40\ns_mov_b32 s34, 18\ns_mul_i32 s35, s38, {2*54*1024}\ns_mul_i32 s40, s39, {18*1024}\ns_add_u32 s35, s35, s40\ns_add_u32 s35, s35, {W4S}\ns_mov_b32 s36, {54*1024}\ns_mov_b32 s37, 2")
    a(f"{go}:")
    a("v_lshrrev_b32 v6, 2, v1\nv_mul_lo_u32 v6, v6, s32\nv_and_b32 v7, 3, v0\nv_lshlrev_b32 v7, 4, v7\nv_add_u32 v6, v6, v7")
    a("s_lshl_b32 s40, s32, 4\ns_mul_i32 s41, s40, s4\ns_add_u32 s41, s41, s33\ns_lshl_b32 s42, s4, 10\ns_lshl_b32 s40, s40, 2\ns_lshl_b32 s43, s34, 1\ns_mov_b32 s44, s4")
    dl=a.lab()
    a(f"{dl}:\ns_mov_b32 m0, s42\ns_nop 0\nbuffer_load_dwordx4 v6, s[28:31], s41 offen lds\ns_add_u32 s41, s41, s40\ns_add_u32 s42, s42, 4096\ns_add_u32 s44, s44, 4\ns_cmp_lt_u32 s44, s43\ns_cbranch_scc1 {dl}")
    nov=a.lab()
    a(f"s_cmp_lg_u32 s37, 0\ns_cbranch_scc1 {nov}")
    for i in range(3):
        a(f"v_add_u32 v8, {256*i}, v0\nv_min_u32 v8, 639, v8\nv_lshlrev_b32 v9, 2, v8")
        for which,R in ((3,16),(4,24),(5,32)):
            for ks in range(8):
                a(f"s_mov_b32 s45, {MODP+ks*15360+which*2560}\nbuffer_load_dword v{R+ks}, v9, s[8:11], s45 offen")
        a("s_waitcnt vmcnt(0)")
        for R in (16,24,32):
            for ks in range(1,8): a(f"v_add_f32 v{R}, v{R}, v{R+ks}")
            bfround(a,R)
        a("v_add_f32 v24, 1.0, v24"); bfround(a,24)
        a(f"v_lshlrev_b32 v10, 1, v8\nv_lshrrev_b32 v11, 16, v24\nds_write_b16 v10, v11 offset:{VB}\nv_lshrrev_b32 v11, 16, v16\nds_write_b16 v10, v11 offset:{VB+1296}\nv_mov_b32 v11, 0x3f80\nds_write_b16 v10, v11 offset:{VB+2592}")
        sk=a.lab()
        a(f"s_cmp_lg_u32 s3, 0\ns_cbranch_scc1 {sk}")
        a(f"s_mov_b32 s45, {V_G}\nbuffer_store_dword v24, v9, s[8:11], s45 offen\ns_mov_b32 s45, {V_SB}\nbuffer_store_dword v16, v9, s[8:11], s45 offen\ns_mov_b32 s45, {V_GB}\nbuffer_store_dword v32, v9, s[8:11], s45 offen")
        a("v_and_b32 v10, 0xffffffe3, v8\nv_bfe_u32 v11, v8, 2, 2\nv_lshlrev_b32 v11, 3, v11\nv_add_u32 v10, v10, v11\nv_bfe_u32 v11, v8, 4, 1\nv_lshlrev_b32 v11, 2, v11\nv_add_u32 v10, v10, v11\nv_lshlrev_b32 v10, 2, v10")
        a(f"s_mov_b32 s45, {V_GAF}\nbuffer_store_dword v24, v10, s[8:11], s45 offen\ns_mov_b32 s45, {V_SBAF}\nbuffer_store_dword v16, v10, s[8:11], s45 offen\n{sk}:")
    a(f"{nov}:\ns_waitcnt vmcnt(0) lgkmcnt(0)\ns_barrier")
    a("v_lshlrev_b32 v6, 2, v5\nv_bfe_u32 v7, v0, 2, 2\nv_add_u32 v6, v6, v7\nv_lshlrev_b32 v6, 6, v6\nv_and_b32 v7, 3, v0\nv_lshlrev_b32 v7, 3, v7\nv_add_u32 v6, v6, v7")
    a("s_lshl_b32 s40, s4, 11\nv_add_u32 v6, s40, v6")
    a(f"v_min_u32 v7, 2, v4\nv_mul_u32_u24 v7, 1296, v7\nv_lshlrev_b32 v8, 3, v5\nv_add_u32 v7, v7, v8\ns_lshl_b32 s40, s4, 6\nv_add_u32 v7, s40, v7\nv_add_u32 v7, {VB}, v7")
    a("v_lshlrev_b32 v9, 4, v1\ns_lshl_b32 s40, s4, 10\ns_add_u32 s41, s35, s40\ns_add_u32 s42, s41, s36\ns_mov_b32 s44, s4")
    for r in range(8): a(f"v_mov_b32 v{40+r}, 0")
    a("v_mov_b32 v48, 0x3f803f80\nv_mov_b32 v49, 0x3f803f80\nv_mov_b32 v50, 0x3f803f80\nv_mov_b32 v51, 0x3f803f80")
    sl,n1=a.lab(),a.lab()
    a(f"{sl}:")
    a("ds_read_b64_tr_b16 v[16:17], v6\nds_read_b64_tr_b16 v[18:19], v6 offset:1024\nds_read_b64_tr_b16 v[20:21], v6 offset:32\nds_read_b64_tr_b16 v[22:23], v6 offset:1056")
    a(f"s_cmp_lg_u32 s37, 0\ns_cbranch_scc1 {n1}\nds_read_b64 v[48:49], v7\nds_read_b64 v[50:51], v7 offset:32\n{n1}:")
    a(f"s_waitcnt lgkmcnt(0)\nbuffer_store_dwordx4 v[16:19], v9, s[8:11], s41 offen {F2W}\nbuffer_store_dwordx4 v[20:23], v9, s[8:11], s42 offen {F2W}")
    a("v_mfma_f32_16x16x32_bf16 v[40:43], v[16:19], v[48:51], v[40:43]\nv_mfma_f32_16x16x32_bf16 v[44:47], v[20:23], v[48:51], v[44:47]")
    a(f"v_add_u32 v6, 8192, v6\nv_add_u32 v7, 256, v7\ns_add_u32 s41, s41, 4096\ns_add_u32 s42, s42, 4096\ns_add_u32 s44, s44, 4\ns_cmp_lt_u32 s44, s34\ns_nop 4\ns_cbranch_scc1 {sl}")
    nored=a.lab()
    a(f"s_cmp_eq_u32 s37, 2\ns_cbranch_scc1 {nored}\ns_nop 7")
    a(f"v_lshlrev_b32 v10, 5, v1\ns_lshl_b32 s40, s4, 11\nv_add_u32 v10, s40, v10\nds_write_b128 v10, v[40:43] offset:{RED}\nds_write_b128 v10, v[44:47] offset:{RED+16}\ns_waitcnt lgkmcnt(0)\ns_barrier")
    a(f"v_lshlrev_b32 v10, 5, v1")
    for w in range(4): a(f"ds_read_b128 v[{52+8*w}:{55+8*w}], v10 offset:{RED+2048*w}\nds_read_b128 v[{56+8*w}:{59+8*w}], v10 offset:{RED+2048*w+16}")
    a("s_waitcnt lgkmcnt(0)")
    for j in range(8):
        a(f"v_add_f32 v{52+j}, v{52+j}, v{60+j}\nv_add_f32 v{68+j}, v{68+j}, v{76+j}\nv_add_f32 v{52+j}, v{52+j}, v{68+j}")
    t3,st=a.lab(),a.lab()
    a(f"v_mul_u32_u24 v10, 2560, v4\nv_lshlrev_b32 v11, 4, v5\nv_add_u32 v10, v10, v11\ns_lshl_b32 s40, s38, 7")
    a(f"s_cmp_eq_u32 s37, 1\ns_cbranch_scc1 {t3}\ns_add_u32 s40, s40, {V_GW}\nv_cmp_gt_u32 vcc, 3, v4\ns_branch {st}\n{t3}:\ns_add_u32 s40, s40, {V_C3}\nv_cmp_gt_u32 vcc, 1, v4\n{st}:")
    a("s_nop 1\ns_and_saveexec_b64 s[46:47], vcc\ns_cmp_lg_u32 s4, 0\ns_cbranch_scc1 "+nored+"x")
    a("buffer_store_dwordx4 v[52:55], v10, s[8:11], s40 offen\nbuffer_store_dwordx4 v[56:59], v10, s[8:11], s40 offen offset:64")
    a(f"{nored}x:\ns_mov_b64 exec, s[46:47]\n{nored}:")
    a(f"s_add_u32 s3, s3, 96\ns_cmp_ge_u32 s3, 154\ns_cbranch_scc1 {done}\ns_waitcnt vmcnt(0) lgkmcnt(0)\ns_barrier\ns_branch {loop}\n{done}:\ns_endpgm")

def k2(a,name):
    a(f".p2align 8\n.type {name},@function\n{name}:")
    lp,le=a.lab(),a.lab()
    a(f"s_cmp_ge_u32 s2, 160\ns_cbranch_scc1 {lp}")
    lds=k2_conv(a)
    a(f"{lp}:\ns_cmp_ge_u32 s2, 256\ns_cbranch_scc1 {le}\ns_sub_u32 s3, s2, 160")
    k2_prep(a)
    a(f"{le}:\ns_endpgm")
    return lds
```

```python
from asmlib import *
from k1 import *
import os
ST_FL=os.environ.get('STFL','sc0 sc1'); LD_FL=os.environ.get('LDFL','sc0 sc1')
SPIN=40000
RING=8; STG=16384
L_ST1=RING*STG
L_ST2=L_ST1+1024
L_ST3=L_ST2+512
LDS3=L_ST3+512
F_S=FLAGS; F_P=FLAGS+2048
S_WS=8; S_OUT=12; S_G=16; S_J=17; S_W=18; S_T0=19
V_L16=1
V_LDSA=2
V_M=4; V_GQ=5
V_X2P=6
V_X1F=14
V_VEC=30
V_DA=42
V_T=46
V_ACC=64
V_AF=96
V_W=128
V_E=224
class VM:
    def __init__(s): s.n=0; s.tag={}
    def issue(s,tag=None):
        s.n+=1
        if tag is not None: s.tag[tag]=s.n
    def wait(s,a,tag):
        if s.tag[tag]==0: return
        k=s.n-s.tag[tag]; assert k<=63,(tag,k)
        a(f"s_waitcnt vmcnt({k})")
def poll(a,off_expr_sgpr,nl,target,slot):
    lp,dn=a.lab(),a.lab()
    a(f"v_lshrrev_b32 v{V_T}, 2, v{V_L16}\nv_min_u32 v{V_T}, {4*(nl-1)}, v{V_T}\ns_mov_b32 s30, {SPIN}")
    a(f"{lp}:\nbuffer_load_dword v{V_T+1}, v{V_T}, s[8:11], s{off_expr_sgpr} offen sc0 sc1\ns_waitcnt vmcnt(0)\nv_cmp_ne_u32 vcc, {target}, v{V_T+1}\ns_nop 4\ns_cbranch_vccz {dn}\ns_sub_u32 s30, s30, 1\ns_cmp_lg_u32 s30, 0\ns_cbranch_scc1 {lp}\n{dn}:")
def setflag(a,soff,val):
    l=a.lab()
    a(f"s_waitcnt vmcnt(0)\ns_barrier\ns_cmp_lg_u32 s{S_W}, 0\ns_cbranch_scc1 {l}\nv_mov_b32 v{V_T}, 0\nv_mov_b32 v{V_T+1}, {val}\nbuffer_store_dword v{V_T+1}, v{V_T}, s[8:11], s{soff} offen sc0 sc1\n{l}:")
def dma(a,vm,stage,i,nkst,srcs,voffs,tagp,flags):
    slot=stage%RING
    a(f"s_add_u32 m0, s21, {slot*STG+i*8192}\ns_add_u32 s22, s{srcs}, {(stage*4+2*i)*1024}\nbuffer_load_dwordx4 v{voffs}, s[8:11], s22 offen {flags} lds")
    vm.issue((tagp,stage,i))
def gemm(a,vm,ph,nK,nt,role_mfma,Dw,srcA,hooks,wissue,wtag,pre_w):
    nst=(nK+3)//4
    ndma=lambda q: 2 if 4*q+4<=nK else 1
    ahead=min(nst,RING)
    for q in range(ahead):
        for i in range(ndma(q)): dma(a,vm,q,i,nK,srcA,V_DA,ph,LD_FL if ph!='p1' else '')
        if nt:
            for s in range(4*q,4*q+4):
                if pre_w<=s<min(Dw,nK): wissue(s)
    if 'post_issue' in hooks: hooks['post_issue']()
    def reads(s):
        st=s//4; slot=st%RING; B=V_AF+16*(s%2)
        for mt in range(4):
            off=slot*STG+(s%4)*4096+mt*1024
            base,o=(V_LDSA,off) if off<65536 else (V_LDSA+1,off-65536)
            a(f"ds_read_b128 v[{B+4*mt}:{B+4*mt+3}], v{base} offset:{o}")
    issued=ahead
    for t in range(nt):
        for r in range(16): a(f"v_mov_b32 v{V_ACC+16*t+r}, 0")
    def sync(q):
        nonlocal issued
        vm.wait(a,(ph,q,ndma(q)-1)); a("s_barrier")
        while issued<nst and issued-RING<=q-2:
            for i in range(ndma(issued)): dma(a,vm,issued,i,nK,srcA,V_DA,ph,LD_FL)
            issued+=1
        if ('stage',q) in hooks: hooks[('stage',q)]()
    sync(0)
    if nt: reads(0)
    for s in range(nK):
        if s+1<nK:
            if (s+1)%4==0: sync((s+1)//4)
            if nt: reads(s+1)
        if nt:
            vm.wait(a,(wtag,s,nt-1))
            a(f"s_waitcnt lgkmcnt({4 if s+1<nK else 0})")
            B=V_AF+16*(s%2)
            for t in range(nt):
                Wr=V_W+4*((s%Dw)*nt+t)
                for mt in range(4):
                    acc=V_ACC+16*t+4*mt
                    a(f"v_mfma_f32_16x16x32_bf16 v[{acc}:{acc+3}], v[{Wr}:{Wr+3}], v[{B+4*mt}:{B+4*mt+3}], v[{acc}:{acc+3}]")
            if s+Dw<nK: wissue(s+Dw)
def mk_wissue(a,vm,nt,Dw,sbases,tag):
    def f(s):
        for t in range(nt):
            Wr=V_W+4*((s%Dw)*nt+t)
            a(f"s_add_u32 s23, s{sbases[t]}, {s*1024}\nbuffer_load_dwordx4 v[{Wr}:{Wr+3}], v{V_L16}, s[8:11], s23 offen")
            vm.issue((tag,s,t))
    return f
def gelu(a,x,t):
    a(f"v_mul_f32 v{t}, v{x}, v{x}\nv_fma_f32 v{t}, v{t}, s40, v{V_T+17}\nv_mul_f32 v{t}, v{t}, v{x}\nv_exp_f32 v{t}, v{t}\nv_add_f32 v{t}, 1.0, v{t}\nv_rcp_f32 v{t}, v{t}\nv_mul_f32 v{x}, v{x}, v{t}")
def gelu4(a,xs,t):
    for i,x in enumerate(xs): a(f"v_mul_f32 v{t+i}, v{x}, v{x}")
    for i,x in enumerate(xs): a(f"v_fma_f32 v{t+i}, v{t+i}, s40, v{V_T+17}")
    for i,x in enumerate(xs): a(f"v_mul_f32 v{t+i}, v{t+i}, v{x}")
    for i,x in enumerate(xs): a(f"v_exp_f32 v{t+i}, v{t+i}")
    for i,x in enumerate(xs): a(f"v_add_f32 v{t+i}, 1.0, v{t+i}")
    for i,x in enumerate(xs): a(f"v_rcp_f32 v{t+i}, v{t+i}")
    for i,x in enumerate(xs): a(f"v_mul_f32 v{x}, v{x}, v{t+i}")

def stats_pieces(a,vm):
    X=V_W; G=V_W+40; SB=V_W+80-0; RAW=V_E
    SB=V_ACC
    def issue():
        a(f"s_sub_u32 s24, s{S_W}, 5\ns_lshl_b32 s24, s24, 2\ns_lshl_b32 s25, s{S_J}, 3\ns_add_u32 s24, s24, s25\ns_add_u32 s24, s24, s{S_T0}")
        a(f"v_add_u32 v{V_T+4}, s24, v{V_GQ}")
        a(f"v_lshrrev_b32 v{V_T+5}, 4, v{V_T+4}\nv_mul_u32_u24 v{V_T+5}, 20480, v{V_T+5}\nv_and_b32 v{V_T+6}, 15, v{V_T+4}\nv_lshlrev_b32 v{V_T+6}, 4, v{V_T+6}\nv_add_u32 v{V_T+5}, v{V_T+5}, v{V_T+6}")
        a(f"v_lshrrev_b32 v{V_T+6}, 2, v{V_M}\nv_lshlrev_b32 v{V_T+6}, 10, v{V_T+6}\nv_add_u32 v{V_T+5}, v{V_T+5}, v{V_T+6}\nv_and_b32 v{V_T+6}, 3, v{V_M}\nv_lshlrev_b32 v{V_T+6}, 8, v{V_T+6}\nv_add_u32 v{V_T+5}, v{V_T+5}, v{V_T+6}")
        a(f"s_mov_b32 s25, {X2}")
        for q in range(5):
            a(f"buffer_load_dwordx4 v[{RAW+4*q}:{RAW+4*q+3}], v{V_T+5}, s[8:11], s25 offen\ns_add_u32 s25, s25, 4096"); vm.issue()
        a(f"v_lshlrev_b32 v{V_T+6}, 5, v{V_M}\ns_mov_b32 s25, {V_GAF}\ns_mov_b32 s26, {V_SBAF}")
        for q in range(5):
            for h in range(2):
                a(f"buffer_load_dwordx4 v[{G+8*q+4*h}:{G+8*q+4*h+3}], v{V_T+6}, s[8:11], s25 offen offset:{512*q+16*h}"); vm.issue()
                a(f"buffer_load_dwordx4 v[{SB+8*q+4*h}:{SB+8*q+4*h+3}], v{V_T+6}, s[8:11], s26 offen offset:{512*q+16*h}"); vm.issue('statld')
    m1,r1,m2,r2,tt=V_T+7,V_T+8,V_T+9,V_T+10,V_T+11
    def p0():
        vm.wait(a,'statld')
        for i in range(20): unpack(a,X+2*i,X+2*i+1,RAW+i)
        a(f"v_add_f32 v{m1}, v{X}, v{X+1}")
        for i in range(2,40): a(f"v_add_f32 v{m1}, v{m1}, v{X+i}")
        dppsum16(a,m1); a(f"v_mul_f32 v{m1}, 0x3acccccd, v{m1}")
    def p1():
        for i in range(40): a(f"v_sub_f32 v{X+i}, v{X+i}, v{m1}")
        a(f"v_mul_f32 v{r1}, v{X}, v{X}")
        for i in range(1,40): a(f"v_fmac_f32 v{r1}, v{X+i}, v{X+i}")
        dppsum16(a,r1)
        a(f"v_mov_b32 v{tt}, 0x3727c5ac\nv_fmac_f32 v{tt}, 0x3acccccd, v{r1}\nv_rsq_f32 v{r1}, v{tt}")
    def p2():
        for i in range(40): a(f"v_mul_f32 v{X+i}, v{X+i}, v{r1}")
        for i in range(40): a(f"v_fma_f32 v{X+i}, v{X+i}, v{G+i}, v{SB+i}")
    def p3():
        a(f"v_add_f32 v{m2}, v{X}, v{X+1}")
        for i in range(2,40): a(f"v_add_f32 v{m2}, v{m2}, v{X+i}")
        dppsum16(a,m2); a(f"v_mul_f32 v{m2}, 0x3acccccd, v{m2}")
        for i in range(40): a(f"v_sub_f32 v{X+i}, v{X+i}, v{m2}")
    def p4():
        a(f"v_mul_f32 v{r2}, v{X}, v{X}")
        for i in range(1,40): a(f"v_fmac_f32 v{r2}, v{X+i}, v{X+i}")
        dppsum16(a,r2)
        a(f"v_mov_b32 v{tt}, 0x3727c5ac\nv_fmac_f32 v{tt}, 0x3acccccd, v{r2}\nv_rsq_f32 v{r2}, v{tt}")
        O=V_E
        a(f"v_mul_f32 v{O}, v{r2}, v{r1}\nv_mul_f32 v{O+1}, v{O}, v{m1}\nv_sub_f32 v{O+1}, 0, v{O+1}\nv_mov_b32 v{O+2}, v{r2}\nv_mul_f32 v{O+3}, v{r2}, v{m2}\nv_sub_f32 v{O+3}, 0, v{O+3}\nv_mov_b32 v{O+4}, v{r1}\nv_mul_f32 v{O+5}, v{m1}, v{r1}")
        a(f"v_lshlrev_b32 v{tt}, 5, v{V_T+4}\ns_mov_b32 s25, {STAT}\nbuffer_store_dwordx4 v[{O}:{O+3}], v{tt}, s[8:11], s25 offen sc0 sc1\nbuffer_store_dwordx2 v[{O+4}:{O+5}], v{tt}, s[8:11], s25 offen offset:16 sc0 sc1"); vm.issue(); vm.issue()
        a(f"s_waitcnt vmcnt(0)\ns_lshl_b32 s25, s{S_G}, 3\ns_add_u32 s25, s25, s{S_J}\ns_lshl_b32 s25, s25, 1\ns_add_u32 s25, s25, s{S_W}\ns_sub_u32 s25, s25, 5\ns_lshl_b32 s25, s25, 2\ns_add_u32 s25, s25, {F_S}")
        a(f"v_mov_b32 v{tt}, 0\nv_mov_b32 v{tt+1}, 1\nbuffer_store_dword v{tt+1}, v{tt}, s[8:11], s25 offen sc0 sc1"); vm.issue()
    return issue,[p0,p1,p2,p3,p4]

def p1_statload(a,vm):
    a(f"s_lshl_b32 s24, s{S_G}, 4\ns_sub_u32 s24, s24, 2\ns_max_i32 s24, s24, 0\ns_min_u32 s24, s24, {512-20}\ns_lshl_b32 s24, s24, 2\ns_add_u32 s24, s24, {F_S}")
    poll(a,24,20,1,0); vm.n+=0
    a(f"v_lshrrev_b32 v{V_T+2}, 4, v{V_L16}\nv_add_u32 v{V_T+3}, s{S_T0}, v{V_T+2}\nv_add_u32 v{V_T+4}, s27, v{V_T+3}")
    a(f"v_cmp_gt_u32 vcc, 2048, v{V_T+4}\nv_min_i32 v{V_T+5}, 2047, v{V_T+4}\nv_max_i32 v{V_T+5}, 0, v{V_T+5}\nv_lshlrev_b32 v{V_T+5}, 5, v{V_T+5}\nv_lshlrev_b32 v{V_T+3}, 5, v{V_T+3}\ns_mov_b32 s25, {STAT}")
    a(f"buffer_load_dwordx4 v[{V_E}:{V_E+3}], v{V_T+5}, s[8:11], s25 offen sc0 sc1\nbuffer_load_dwordx2 v[{V_E+4}:{V_E+5}], v{V_T+3}, s[8:11], s25 offen offset:16 sc0 sc1\ns_waitcnt vmcnt(0)")
    for r in range(4): a(f"v_cndmask_b32 v{V_E+r}, 0, v{V_E+r}, vcc")
    a(f"v_lshrrev_b32 v{V_T+6}, 1, v{V_L16}\nv_add_u32 v{V_T+7}, {L_ST1}, v{V_L16}\nv_add_u32 v{V_T+6}, {L_ST2}, v{V_T+6}\nds_write_b128 v{V_T+7}, v[{V_E}:{V_E+3}]\nds_write_b64 v{V_T+6}, v[{V_E+4}:{V_E+5}]\ns_waitcnt lgkmcnt(0)")

def set_dma_addr(a,shift,nS,base):
    a(f"s_and_b32 s24, s{S_W}, 3\ns_lshl_b32 s24, s24, 4\ns_add_u32 s24, s24, s{S_T0}\nv_add_u32 v{V_T}, s24, v{V_M}")
    if shift: a(f"v_add_u32 v{V_T}, s27, v{V_T}\nv_min_i32 v{V_T}, 2047, v{V_T}\nv_max_i32 v{V_T}, 0, v{V_T}")
    a(f"v_lshrrev_b32 v{V_T+1}, 4, v{V_T}\nv_mul_u32_u24 v{V_T+1}, {nS*1024}, v{V_T+1}\nv_and_b32 v{V_T}, 15, v{V_T}\nv_lshlrev_b32 v{V_T}, 4, v{V_T}\nv_add_u32 v{V_T+1}, v{V_T+1}, v{V_T}\nv_lshlrev_b32 v{V_T}, 8, v{V_GQ}\nv_add_u32 v{V_DA}, v{V_T+1}, v{V_T}")
    a(f"s_lshr_b32 s24, s{S_W}, 2\ns_lshl_b32 s24, s24, 10\ns_add_u32 s28, s24, {base}")

def epi_addr(a,nS,ntreg,dst):
    a(f"s_lshr_b32 s24, s{ntreg}, 1\ns_lshl_b32 s24, s24, 10\ns_and_b32 s25, s{ntreg}, 1\ns_lshl_b32 s25, s25, 3\ns_add_u32 s24, s24, s25\ns_mul_i32 s25, s{S_G}, {4*nS*1024}\ns_add_u32 s24, s24, s25\ns_add_u32 s{dst}, s24, 0")


def wave_prog(a,role):
    vm=VM(); M=role=='M'
    pf=Prof(a) if M else None
    st=(lambda: pf.stamp()) if M else (lambda: None)
    st()
    a(f"s_mul_i32 s31, s{S_J}, 5\ns_add_u32 s31, s31, s{S_W}")
    if M:
        a(f"s_mul_i32 s32, s31, 20480\ns_add_u32 s32, s32, {W1S}")
        a(f"s_lshl_b32 s24, s31, 6\nv_lshlrev_b32 v{V_T+13}, 4, v{V_GQ}\nv_add_u32 v{V_T+13}, s24, v{V_T+13}")
        for i,b in enumerate((V_GW,V_S1,V_C1)):
            a(f"s_mov_b32 s25, {b}\nbuffer_load_dwordx4 v[{V_VEC+4*i}:{V_VEC+4*i+3}], v{V_T+13}, s[8:11], s25 offen"); vm.issue()
    set_dma_addr(a,True,20,Y2)
    hooks={}
    if role=='S':
        iss,pcs=stats_pieces(a,vm); iss()
        for q in range(5): hooks[('stage',q)]=pcs[q]
    w1=mk_wissue(a,vm,1,20,[32],'w1') if M else None
    gemm(a,vm,'p1',20,1 if M else 0,M,20,28,hooks,w1,'w1',0)
    st()
    epi_addr(a,20,31,33)
    if M:
        a(f"s_mul_i32 s32, s31, 20480\ns_add_u32 s32, s32, {W2S}")
        w2=mk_wissue(a,vm,1,20,[32],'w2')
        for s in range(20): w2(s)
        a(f"s_add_u32 s34, s33, {X2}")
        for mt in range(4):
            a(f"buffer_load_dwordx2 v[{V_X2P+2*mt}:{V_X2P+2*mt+1}], v{V_L16}, s[8:11], s34 offen\ns_add_u32 s34, s34, 20480"); vm.issue('x2')
    if role=='P': p1_statload(a,vm)
    a("s_barrier")
    if M:
        a(f"v_lshlrev_b32 v{V_T+14}, 4, v{V_M}\nv_add_u32 v{V_T+14}, {L_ST1}, v{V_T+14}")
        for mt in range(4): a(f"ds_read_b128 v[{V_E+4*mt}:{V_E+4*mt+3}], v{V_T+14} offset:{256*mt}")
        a(f"s_add_u32 s34, s33, {GA}\ns_waitcnt lgkmcnt(0)")
        for mt in range(4):
            S=V_E+4*mt; A_=V_ACC+4*mt
            for r in range(4): a(f"v_mul_f32 v{A_+r}, v{A_+r}, v{S}")
            for q in range(3):
                for r in range(4): a(f"v_fmac_f32 v{A_+r}, v{S+1+q}, v{V_VEC+4*q+r}")
            gelu4(a,[A_+r for r in range(4)],V_E+16)
            a(f"v_cvt_pk_bf16_f32 v{V_E+20+2*mt}, v{A_}, v{A_+1}\nv_cvt_pk_bf16_f32 v{V_E+21+2*mt}, v{A_+2}, v{A_+3}")
            a(f"buffer_store_dwordx2 v[{V_E+20+2*mt}:{V_E+21+2*mt}], v{V_L16}, s[8:11], s34 offen {ST_FL}\ns_add_u32 s34, s34, 20480"); vm.issue()
        for i,b in enumerate((V_G,V_SB,V_GB)):
            a(f"s_mov_b32 s25, {b}\nbuffer_load_dwordx4 v[{V_VEC+4*i}:{V_VEC+4*i+3}], v{V_T+13}, s[8:11], s25 offen"); vm.issue()
    st()
    a(f"s_lshl_b32 s35, s{S_G}, 5\ns_add_u32 s35, s35, {F_P}\ns_lshl_b32 s24, s{S_J}, 2\ns_add_u32 s36, s35, s24")
    setflag(a,36,1)
    set_dma_addr(a,False,20,GA)
    poll(a,35,8,1,1)
    st()
    vm=VM()
    if M:
        w2=mk_wissue(a,vm,1,20,[32],'w2'); vm.tag.update({('w2',s,0):0 for s in range(20)})
    gemm(a,vm,'p2',20,1 if M else 0,M,20,28,{},w2 if M else None,'w2',20)
    st()
    a(f"s_mul_i32 s37, s{S_J}, 14\ns_sub_u32 s24, s{S_J}, 4\ns_max_i32 s24, s24, 0\ns_sub_u32 s37, s37, s24")
    a(f"s_add_u32 s38, s37, s{S_W}\ns_add_u32 s39, s38, 8")
    a(f"s_mul_i32 s41, s38, 20480\ns_add_u32 s41, s41, {W3S}\ns_mul_i32 s42, s39, 20480\ns_add_u32 s42, s42, {W3S}")
    def p3(nt,pst):
        DW=12
        vm=VM(); w3=mk_wissue(a,vm,nt,DW,[41,42],'w3')
        if not M:
            for s in range(DW): w3(s)
        if M:
            for s in range(DW): w3(s)
            a(f"v_lshlrev_b32 v{V_T+14}, 3, v{V_M}\nv_add_u32 v{V_T+14}, {L_ST2}, v{V_T+14}")
            for mt in range(4): a(f"ds_read_b64 v[{V_E+2*mt}:{V_E+2*mt+1}], v{V_T+14} offset:{128*mt}")
            a(f"v_cmp_eq_u32 vcc, 0, v{V_M}\nv_mov_b32 v{V_T}, 0x3f803f80\nv_cndmask_b32 v{V_E+8}, 0, v{V_T}, vcc\nv_mov_b32 v{V_E+9}, v{V_E+8}\nv_cmp_eq_u32 vcc, 1, v{V_M}\ns_nop 1\nv_cndmask_b32 v{V_E+10}, 0, v{V_T}, vcc\nv_mov_b32 v{V_E+11}, v{V_E+10}")
            a(f"s_add_u32 s34, s33, {X1}")
            a(f"v_add_u32 v{V_T+15}, s{S_T0}, v{V_M}\nv_mul_u32_u24 v{V_T+15}, 320, v{V_T+15}\ns_lshl_b32 s24, s31, 3\ns_add_u32 s24, s24, {PSTAT}\ns_waitcnt lgkmcnt(0)")
            for mt in range(4):
                X=V_X1F+4*mt; A_=V_ACC+4*mt; P=V_E+12;
                unpack(a,X,X+1,V_X2P+2*mt); unpack(a,X+2,X+3,V_X2P+2*mt+1)
                for r in range(4): a(f"v_fma_f32 v{X+r}, v{X+r}, v{V_E+2*mt}, -v{V_E+2*mt+1}")
                for r in range(4): a(f"v_fma_f32 v{X+r}, v{X+r}, v{V_VEC+r}, v{V_VEC+4+r}")
                for r in range(4): a(f"v_add_f32 v{X+r}, v{X+r}, v{A_+r}")
                for r in range(4): a(f"v_mul_f32 v{A_+r}, v{X+r}, v{X+r}")
                P=V_E+12+4*(mt%2)
                a(f"v_cvt_pk_bf16_f32 v{P}, v{X}, v{X+1}\nv_cvt_pk_bf16_f32 v{P+1}, v{X+2}, v{X+3}\nv_cvt_pk_bf16_f32 v{P+2}, v{A_}, v{A_+1}\nv_cvt_pk_bf16_f32 v{P+3}, v{A_+2}, v{A_+3}")
                a(f"buffer_store_dwordx2 v[{P}:{P+1}], v{V_L16}, s[8:11], s34 offen {ST_FL}\ns_add_u32 s34, s34, 20480")
                D=V_E+20
                a(f"v_mfma_f32_16x16x32_bf16 v[{D}:{D+3}], v[{V_E+8}:{V_E+11}], v[{P}:{P+3}], 0")
                a(f"s_nop 7\ns_mov_b64 exec, 0xffff\nbuffer_store_dwordx2 v[{D}:{D+1}], v{V_T+15}, s[8:11], s24 offen {ST_FL}\ns_mov_b64 exec, -1\ns_add_u32 s24, s24, {16*320}")
        st() if M else None
        a(f"s_add_u32 s35, s35, 1024\ns_add_u32 s36, s36, 1024")
        setflag(a,36,1)
        set_dma_addr(a,False,20,X1)
        poll(a,35,8,1,2)
        st() if M else None
        vm=VM(); w3=mk_wissue(a,vm,nt,DW,[41,42],'w3')
        vm.tag.update({('w3',s,t):0 for s in range(DW) for t in range(nt)})
        hooks={}
        C3=V_E+24
        def c3load():
            for t in range(nt):
                a(f"s_lshl_b32 s24, s{38+t}, 6\ns_add_u32 s24, s24, {V_C3}\nv_lshlrev_b32 v{V_T+2}, 4, v{V_GQ}\nbuffer_load_dwordx4 v[{C3+4*t}:{C3+4*t+3}], v{V_T+2}, s[8:11], s24 offen"); vm.issue('c3')
        hooks[('stage',4)]=c3load
        if pst:
            PB=176
            def pl():
                a(f"v_lshrrev_b32 v{V_T+2}, 4, v{V_L16}\nv_add_u32 v{V_T+2}, s{S_T0}, v{V_T+2}\nv_mul_u32_u24 v{V_T+2}, 320, v{V_T+2}\ns_mov_b32 s24, {PSTAT}")
                for i in range(20):
                    a(f"buffer_load_dwordx4 v[{PB+4*i}:{PB+4*i+3}], v{V_T+2}, s[8:11], s24 offen offset:{16*i} {LD_FL}"); vm.issue('pst')
            hooks['post_issue']=pl
            def pr():
                vm.wait(a,'pst')
                for i in range(1,40):
                    a(f"v_add_f32 v{PB}, v{PB}, v{PB+2*i}\nv_add_f32 v{PB+1}, v{PB+1}, v{PB+2*i+1}")
                a(f"v_mul_f32 v{PB}, 0x3acccccd, v{PB}\nv_mul_f32 v{PB+1}, 0x3acccccd, v{PB+1}\nv_fma_f32 v{PB+1}, -v{PB}, v{PB}, v{PB+1}\nv_add_f32 v{PB+1}, 0x3727c5ac, v{PB+1}\nv_rsq_f32 v{PB+2}, v{PB+1}\nv_mul_f32 v{PB+3}, v{PB}, v{PB+2}\nv_sub_f32 v{PB+3}, 0, v{PB+3}")
                a(f"v_lshrrev_b32 v{V_T+2}, 1, v{V_L16}\nv_add_u32 v{V_T+2}, {L_ST3}, v{V_T+2}\nds_write_b64 v{V_T+2}, v[{PB+2}:{PB+3}]\ns_waitcnt lgkmcnt(0)")
            hooks[('stage',1)]=pr
        gemm(a,vm,'p3',20,nt,True,DW,28,hooks,w3,'w3',DW)
        st() if M else None
        vm.wait(a,'c3')
        if M:
            a(f"s_mul_i32 s32, s31, {54*1024}\ns_add_u32 s32, s32, {W4S}")
        a(f"v_lshlrev_b32 v{V_T+14}, 3, v{V_M}\nv_add_u32 v{V_T+14}, {L_ST3}, v{V_T+14}")
        for mt in range(4): a(f"ds_read_b64 v[{V_E+2*mt}:{V_E+2*mt+1}], v{V_T+14} offset:{128*mt}")
        if M:
            w4=mk_wissue(a,vm,1,24,[32],'w4')
            for s in range(24): w4(s)
        a("s_waitcnt lgkmcnt(0)")
        for t in range(nt):
            epi_addr(a,54,38+t,34); a(f"s_add_u32 s34, s34, {H3}")
            for mt in range(4):
                A_=V_ACC+16*t+4*mt
                for r in range(4): a(f"v_mul_f32 v{A_+r}, v{A_+r}, v{V_E+2*mt}")
                for r in range(4): a(f"v_fmac_f32 v{A_+r}, v{V_E+2*mt+1}, v{C3+4*t+r}")
                gelu4(a,[A_+r for r in range(4)],V_E+16)
                P=V_E+8+2*(mt%4)
                a(f"v_cvt_pk_bf16_f32 v{P}, v{A_}, v{A_+1}\nv_cvt_pk_bf16_f32 v{P+1}, v{A_+2}, v{A_+3}")
                a(f"buffer_store_dwordx2 v[{P}:{P+1}], v{V_L16}, s[8:11], s34 offen {ST_FL}\ns_add_u32 s34, s34, {54*1024}")
        st() if M else None
        a(f"s_add_u32 s35, s35, 1024\ns_add_u32 s36, s36, 1024")
        setflag(a,36,1)
    l1,l2=a.lab(),a.lab()
    if M: p3(2,False)
    elif role=='P': p3(1,True)
    else:
        a(f"s_cmp_eq_u32 s{S_W}, 5\ns_cselect_b32 s24, s{S_J}, 7\ns_cmp_lt_u32 s24, 4\ns_cbranch_scc0 {l1}")
        p3(2,False); a(f"s_branch {l2}\n{l1}:"); p3(1,False); a(f"{l2}:")
    set_dma_addr(a,False,54,H3)
    poll(a,35,8,1,3)
    st()
    vm=VM()
    if M:
        w4=mk_wissue(a,vm,1,24,[32],'w4'); vm.tag.update({('w4',s,0):0 for s in range(24)})
    gemm(a,vm,'p4',54,1 if M else 0,M,24,28,{},w4 if M else None,'w4',24)
    st()
    if M:
        a(f"v_add_u32 v{V_T+15}, s{S_T0}, v{V_M}\nv_mul_u32_u24 v{V_T+15}, 1280, v{V_T+15}\nv_lshlrev_b32 v{V_T+14}, 3, v{V_GQ}\nv_add_u32 v{V_T+15}, v{V_T+15}, v{V_T+14}\ns_lshl_b32 s24, s31, 5")
        for mt in range(4):
            X=V_X1F+4*mt; A_=V_ACC+4*mt; F=V_E+4*(mt%2)
            unpack(a,F,F+1,V_X2P+2*mt); unpack(a,F+2,F+3,V_X2P+2*mt+1)
            for r in range(4): a(f"v_add_f32 v{A_+r}, v{A_+r}, v{X+r}")
            for r in range(4): a(f"v_fmac_f32 v{F+r}, v{A_+r}, v{V_VEC+8+r}")
            P=V_E+8+2*mt
            a(f"v_cvt_pk_bf16_f32 v{P}, v{F}, v{F+1}\nv_cvt_pk_bf16_f32 v{P+1}, v{F+2}, v{F+3}")
            a(f"buffer_store_dwordx2 v[{P}:{P+1}], v{V_T+15}, s[12:15], s24 offen\ns_add_u32 s24, s24, {16*1280}")
        st();
        if PROF: a("s_waitcnt vmcnt(0)"); st(); pf.dump(9,0)
    a("s_endpgm")

def k3(a):
    n="mlp_kernel"
    a(f".p2align 8\n.type {n},@function\n{n}:")
    le,lh,lp=a.lab(),a.lab(),a.lab()
    a(f"s_cmp_ge_u32 s2, 256\ns_cbranch_scc1 {le}")
    srd(a,S_WS,'ws',WSZ); srd(a,S_OUT,'out',2048*640*2); Prof(a).init()
    a(f"s_and_b32 s24, s2, 7\ns_lshl_b32 s24, s24, 2\ns_bfe_u32 s25, s2, 0x20003\ns_add_u32 s{S_G}, s24, s25\ns_lshr_b32 s{S_J}, s2, 5\ns_lshl_b32 s{S_T0}, s{S_G}, 6")
    a(f"v_lshrrev_b32 v{V_T}, 6, v0\nv_and_b32 v{V_L16}, 63, v0\nv_readfirstlane_b32 s{S_W}, v{V_T}\nv_and_b32 v{V_M}, 15, v0\nv_bfe_u32 v{V_GQ}, v0, 4, 2\nv_lshlrev_b32 v{V_L16}, 4, v{V_L16}")
    a(f"v_mov_b32 v{V_LDSA}, v{V_L16}\nv_add_u32 v{V_LDSA+1}, 0x10000, v{V_L16}\ns_lshl_b32 s21, s{S_W}, 10")
    a(f"s_lshr_b32 s24, s{S_J}, 2\ns_add_u32 s24, s24, 1\ns_sub_u32 s25, 0, s24\ns_bitcmp1_b32 s{S_J}, 1\ns_cselect_b32 s27, s24, s25")
    a(f"s_mov_b32 s40, 0xbdd2d3e8\nv_mov_b32 v{V_T+17}, 0xc0135761\ns_waitcnt lgkmcnt(0)")
    a(f"s_cmp_ge_u32 s{S_W}, 5\ns_cbranch_scc1 {lh}")
    wave_prog(a,'M')
    a(f"{lh}:\ns_cmp_eq_u32 s{S_W}, 7\ns_cbranch_scc1 {lp}")
    wave_prog(a,'S')
    a(f"{lp}:")
    wave_prog(a,'P')
    a(f"{le}:\ns_endpgm")
    return [(n,256,512,LDS3,256,256)]
```

```python
import sys
from asmlib import *
import k1 as K1, k2 as K2
NAME="adaLN_cond__ssm_conv_s4__mixer_s_mlp__prompt"
def desc(n,vg=256,acc=256,sg=102):
    return f""".amdhsa_kernel {n}
  .amdhsa_next_free_vgpr {vg}
  .amdhsa_next_free_sgpr {sg}
  .amdhsa_accum_offset {acc}
  .amdhsa_group_segment_fixed_size 0
  .amdhsa_kernarg_size 152
  .amdhsa_user_sgpr_count 2
  .amdhsa_user_sgpr_kernarg_segment_ptr 1
  .amdhsa_system_sgpr_workgroup_id_x 1
.end_amdhsa_kernel"""
def build(out, upto=99):
    a=Asm(); ks=[]
    n1=NAME+"_kernel"; l=K1.k1(a,n1); ks.append((n1,504,256,l,256,256))
    if upto>=2:
        n="conv_kernel"; l=K2.k2(a,n); ks.append((n,256,256,l,256,256))
    if upto>=3:
        import k3 as K3
        ks+=K3.k3(a)
    body=pad(a.L)
    hdr=[f"; @launch kernel={n} grid=({g},1,1) block=({b},1,1) lds={l}" for n,g,b,l,_,_ in ks]
    txt="\n".join(hdr)+'\n.amdgcn_target "amdgcn-amd-amdhsa--gfx950"\n.text\n'+"".join(f".globl {k[0]}\n" for k in ks)
    txt+="\n".join(body)+'\n.section .rodata,"a"\n'+"".join(".p2align 6\n"+desc(k[0],k[4],k[5])+"\n" for k in ks)
    open(out,"w").write(txt)
    print(out,len(txt),"bytes",[(k[0][-14:],k[1],k[3]) for k in ks])
if __name__=="__main__":
    build(sys.argv[1], int(sys.argv[2]) if len(sys.argv)>2 else 99)
```

```python
from asmlib import *
from k1 import *
import os
import copy
class FL: pass
SAFE=FL(); SAFE.st='sc0 sc1'; SAFE.ld='sc0 sc1'; SAFE.fs='sc0 sc1'; SAFE.fl='sc0 sc1'
FAST=FL(); FAST.st=os.environ.get('FST',''); FAST.ld=os.environ.get('FLD',''); FAST.fs=os.environ.get('FFS',''); FAST.fl=os.environ.get('FFL','sc1')
FORCE=os.environ.get('FORCE','')
CUR=SAFE
SPIN=40000
RING=8; STG=16384
L_ST1=RING*STG
L_ST2=L_ST1+1024
L_ST3=L_ST2+512
L_MODE=L_ST3+512
LDS3=L_MODE+16
F_S=FLAGS; F_P=FLAGS+2048
S_WS=8; S_OUT=12; S_G=16; S_J=17; S_W=18; S_T0=19
V_L16=1
V_LDSA=2
V_M=4; V_GQ=5
V_X2P=6
V_X1F=14
V_VEC=30
V_DA=42
V_T=46
V_ACC=64
V_AF=96
V_W=128
V_E=224
class VM:
    def __init__(s): s.n=0; s.tag={}
    def issue(s,tag=None):
        s.n+=1
        if tag is not None: s.tag[tag]=s.n
    def wait(s,a,tag):
        if s.tag[tag]==0: return
        k=s.n-s.tag[tag]; assert k<=63,(tag,k)
        a(f"s_waitcnt vmcnt({k})")
def poll(a,off_expr_sgpr,nl,target,slot,fl='sc0 sc1'):
    lp,dn=a.lab(),a.lab()
    a(f"v_lshrrev_b32 v{V_T}, 2, v{V_L16}\nv_min_u32 v{V_T}, {4*(nl-1)}, v{V_T}\ns_mov_b32 s30, {SPIN}")
    a(f"{lp}:\nbuffer_load_dword v{V_T+1}, v{V_T}, s[8:11], s{off_expr_sgpr} offen {fl}\ns_waitcnt vmcnt(0)\n{('v_cmp_eq_u32 vcc, 0' if target is None else 'v_cmp_ne_u32 vcc, '+str(target))}, v{V_T+1}\ns_nop 4\ns_cbranch_vccz {dn}\ns_sub_u32 s30, s30, 1\ns_cmp_lg_u32 s30, 0\ns_cbranch_scc1 {lp}\n{dn}:")
def setflag(a,soff,val):
    l=a.lab()
    a(f"s_waitcnt vmcnt(0)\ns_barrier\ns_cmp_lg_u32 s{S_W}, 0\ns_cbranch_scc1 {l}\nv_mov_b32 v{V_T}, 0\nv_mov_b32 v{V_T+1}, {val}\nbuffer_store_dword v{V_T+1}, v{V_T}, s[8:11], s{soff} offen {CUR.fs}\n{l}:")
def dma(a,vm,stage,i,nkst,srcs,voffs,tagp,flags):
    slot=stage%RING
    a(f"s_add_u32 m0, s21, {slot*STG+i*8192}\ns_add_u32 s22, s{srcs}, {(stage*4+2*i)*1024}\nbuffer_load_dwordx4 v{voffs}, s[8:11], s22 offen {flags} lds")
    vm.issue((tagp,stage,i))
def gemm(a,vm,ph,nK,nt,role_mfma,Dw,srcA,hooks,wissue,wtag,pre_w):
    nst=(nK+3)//4
    ndma=lambda q: 2 if 4*q+4<=nK else 1
    ahead=min(nst,RING)
    for q in range(ahead):
        for i in range(ndma(q)): dma(a,vm,q,i,nK,srcA,V_DA,ph,CUR.ld if ph!='p1' else '')
        if nt and 'single' not in hooks:
            for s in range(4*q,4*q+4):
                if pre_w<=s<min(Dw,nK): wissue(s)
    if nt and 'single' in hooks:
        for s in range(min(Dw,nK)): wissue(s)
    if 'post_issue' in hooks: hooks['post_issue']()
    def reads(s):
        st=s//4; slot=st%RING; B=V_AF+16*(s%2)
        for mt in range(4):
            off=slot*STG+(s%4)*4096+mt*1024
            base,o=(V_LDSA,off) if off<65536 else (V_LDSA+1,off-65536)
            a(f"ds_read_b128 v[{B+4*mt}:{B+4*mt+3}], v{base} offset:{o}")
    issued=ahead
    for t in range(nt):
        for r in range(16): a(f"v_mov_b32 v{V_ACC+16*t+r}, 0")
    def sync(q):
        nonlocal issued
        if 'single' in hooks:
            if q==0: vm.wait(a,(ph,nst-1,ndma(nst-1)-1)); a("s_barrier")
            return
        vm.wait(a,(ph,q,ndma(q)-1)); a("s_barrier")
        while issued<nst and issued-RING<=q-2:
            for i in range(ndma(issued)): dma(a,vm,issued,i,nK,srcA,V_DA,ph,CUR.ld if ph!='p1' else '')
            issued+=1
        if ('stage',q) in hooks: hooks[('stage',q)]()
    sync(0)
    if nt: reads(0)
    for s in range(nK):
        if s+1<nK:
            if (s+1)%4==0: sync((s+1)//4)
            if nt: reads(s+1)
        if nt:
            vm.wait(a,(wtag,s,nt-1))
            a(f"s_waitcnt lgkmcnt({4 if s+1<nK else 0})")
            B=V_AF+16*(s%2)
            for t in range(nt):
                Wr=V_W+4*((s%Dw)*nt+t)
                for mt in range(4):
                    acc=V_ACC+16*t+4*mt
                    a(f"v_mfma_f32_16x16x32_bf16 v[{acc}:{acc+3}], v[{Wr}:{Wr+3}], v[{B+4*mt}:{B+4*mt+3}], v[{acc}:{acc+3}]")
            if s+Dw<nK: wissue(s+Dw)
            elif 'next_w' in hooks: hooks['next_w'](s)
def mk_wissue(a,vm,nt,Dw,sbases,tag):
    def f(s):
        for t in range(nt):
            Wr=V_W+4*((s%Dw)*nt+t)
            a(f"s_add_u32 s23, s{sbases[t]}, {s*1024}\nbuffer_load_dwordx4 v[{Wr}:{Wr+3}], v{V_L16}, s[8:11], s23 offen")
            vm.issue((tag,s,t))
    return f
def gelu(a,x,t):
    a(f"v_mul_f32 v{t}, v{x}, v{x}\nv_fma_f32 v{t}, v{t}, s40, v{V_T+17}\nv_mul_f32 v{t}, v{t}, v{x}\nv_exp_f32 v{t}, v{t}\nv_add_f32 v{t}, 1.0, v{t}\nv_rcp_f32 v{t}, v{t}\nv_mul_f32 v{x}, v{x}, v{t}")
def gelu4(a,xs,t):
    for i,x in enumerate(xs): a(f"v_mul_f32 v{t+i}, v{x}, v{x}")
    for i,x in enumerate(xs): a(f"v_fma_f32 v{t+i}, v{t+i}, s40, v{V_T+17}")
    for i,x in enumerate(xs): a(f"v_mul_f32 v{t+i}, v{t+i}, v{x}")
    for i,x in enumerate(xs): a(f"v_exp_f32 v{t+i}, v{t+i}")
    for i,x in enumerate(xs): a(f"v_add_f32 v{t+i}, 1.0, v{t+i}")
    for i,x in enumerate(xs): a(f"v_rcp_f32 v{t+i}, v{t+i}")
    for i,x in enumerate(xs): a(f"v_mul_f32 v{x}, v{x}, v{t+i}")

def red64(a,r,sdst,mulc=None):
    a(f"v_cndmask_b32 v{r}, 0, v{r}, vcc")
    dppsum16(a,r)
    a(f"v_add_f32_dpp v{r}, v{r}, v{r} row_bcast:15 row_mask:0xa bank_mask:0xf")
    a(f"v_add_f32_dpp v{r}, v{r}, v{r} row_bcast:31 row_mask:0xc bank_mask:0xf")
def rowstats(a,vm):
    X=V_AF; G=V_AF+16; SB=V_E; RAW=V_E+16
    def issue():
        a(f"s_lshl_b32 s24, s{S_J}, 3\ns_add_u32 s24, s24, s{S_W}\ns_add_u32 s44, s24, s{S_T0}")
        a(f"s_lshr_b32 s24, s44, 4\ns_mul_i32 s24, s24, 20480\ns_and_b32 s25, s44, 15\ns_lshl_b32 s25, s25, 4\ns_add_u32 s24, s24, s25\ns_add_u32 s24, s24, {X2}")
        a(f"v_lshrrev_b32 v{V_T+4}, 4, v{V_L16}\nv_min_u32 v{V_T+4}, 39, v{V_T+4}\nv_lshrrev_b32 v{V_T+5}, 1, v{V_T+4}\nv_lshlrev_b32 v{V_T+5}, 10, v{V_T+5}\nv_and_b32 v{V_T+6}, 1, v{V_T+4}\nv_lshlrev_b32 v{V_T+6}, 9, v{V_T+6}\nv_add_u32 v{V_T+5}, v{V_T+5}, v{V_T+6}\nv_lshlrev_b32 v{V_T+6}, 6, v{V_T+4}")
        a(f"buffer_load_dwordx4 v[{RAW}:{RAW+3}], v{V_T+5}, s[8:11], s24 offen\nbuffer_load_dwordx4 v[{RAW+4}:{RAW+7}], v{V_T+5}, s[8:11], s24 offen offset:256"); vm.issue(); vm.issue()
        a(f"s_mov_b32 s25, {V_GAF}\ns_mov_b32 s26, {V_SBAF}")
        for h in range(4):
            a(f"buffer_load_dwordx4 v[{G+4*h}:{G+4*h+3}], v{V_T+6}, s[8:11], s25 offen offset:{16*h}"); vm.issue()
            a(f"buffer_load_dwordx4 v[{SB+4*h}:{SB+4*h+3}], v{V_T+6}, s[8:11], s26 offen offset:{16*h}"); vm.issue('statld')
    def comp():
        p,q=V_T+7,V_T+8
        vm.wait(a,'statld')
        a(f"v_cmp_gt_u32 vcc, {40*16}, v{V_L16}")
        for i in range(8): unpack(a,X+2*i,X+2*i+1,RAW+i)
        def sum16(sq):
            if sq:
                a(f"v_mul_f32 v{p}, v{X}, v{X}\nv_mul_f32 v{q}, v{X+1}, v{X+1}")
                for i in range(2,16): a(f"v_fmac_f32 v{p+(i&1)}, v{X+i}, v{X+i}")
            else:
                a(f"v_add_f32 v{p}, v{X}, v{X+2}\nv_add_f32 v{q}, v{X+1}, v{X+3}")
                for i in range(4,16): a(f"v_add_f32 v{p+(i&1)}, v{p+(i&1)}, v{X+i}")
            a(f"v_add_f32 v{p}, v{p}, v{q}"); red64(a,p,None)
        def mean(sd):
            sum16(False); a(f"v_mul_f32 v{p}, 0x3acccccd, v{p}\nv_readlane_b32 s{sd}, v{p}, 63")
            for i in range(16): a(f"v_subrev_f32 v{X+i}, s{sd}, v{X+i}")
        def rstd(sd):
            sum16(True); a(f"v_mov_b32 v{q}, 0x3727c5ac\nv_fmac_f32 v{q}, 0x3acccccd, v{p}\nv_rsq_f32 v{q}, v{q}\nv_readlane_b32 s{sd}, v{q}, 63")
        mean(45); rstd(46)
        for i in range(16): a(f"v_mul_f32 v{G+i}, s46, v{G+i}")
        for i in range(16): a(f"v_fma_f32 v{X+i}, v{X+i}, v{G+i}, v{SB+i}")
        mean(47); rstd(48)
        O=V_E
        a(f"v_mov_b32 v{O+4}, s46\nv_mov_b32 v{O+2}, s48\nv_mul_f32 v{O}, s48, v{O+4}\nv_mul_f32 v{O+1}, s45, v{O}\nv_sub_f32 v{O+1}, 0, v{O+1}\nv_mul_f32 v{O+3}, s47, v{O+2}\nv_sub_f32 v{O+3}, 0, v{O+3}\nv_mul_f32 v{O+5}, s45, v{O+4}\nv_mov_b32 v{O+6}, s43\nv_mov_b32 v{O+7}, 0")
        a(f"s_lshl_b32 s24, s44, 5\ns_add_u32 s24, s24, {STAT}\nv_mov_b32 v{p}, 0\ns_mov_b64 exec, 1\nbuffer_store_dwordx4 v[{O}:{O+3}], v{p}, s[8:11], s24 offen sc0 sc1\nbuffer_store_dwordx4 v[{O+4}:{O+7}], v{p}, s[8:11], s24 offen offset:16 sc0 sc1\ns_mov_b64 exec, -1")
    return issue,comp

def p1_statload(a,vm,st):
    lp,dn=a.lab(),a.lab()
    a(f"v_lshrrev_b32 v{V_T+2}, 4, v{V_L16}\nv_add_u32 v{V_T+3}, s{S_T0}, v{V_T+2}\nv_add_u32 v{V_T+4}, s27, v{V_T+3}")
    a(f"v_min_i32 v{V_T+5}, 2047, v{V_T+4}\nv_max_i32 v{V_T+5}, 0, v{V_T+5}\nv_lshlrev_b32 v{V_T+5}, 5, v{V_T+5}\nv_lshlrev_b32 v{V_T+3}, 5, v{V_T+3}\ns_mov_b32 s25, {STAT}\ns_mov_b32 s30, {SPIN}")
    a(f"{lp}:\nbuffer_load_dwordx4 v[{V_E}:{V_E+3}], v{V_T+5}, s[8:11], s25 offen sc0 sc1\nbuffer_load_dwordx4 v[{V_E+4}:{V_E+7}], v{V_T+3}, s[8:11], s25 offen offset:16 sc0 sc1\ns_waitcnt vmcnt(0)")
    a(f"v_cmp_eq_u32 vcc, 0, v{V_E}\nv_cmp_eq_u32 s[28:29], 0, v{V_E+4}\ns_nop 4\ns_or_b64 vcc, vcc, s[28:29]\ns_cbranch_vccz {dn}\ns_sub_u32 s30, s30, 1\ns_cmp_lg_u32 s30, 0\ns_cbranch_scc1 {lp}\n{dn}:")
    st()
    a(f"v_cmp_ne_u32 vcc, s43, v{V_E+6}\ns_nop 4\ns_cmp_eq_u64 vcc, 0\ns_cselect_b32 s25, 1, 0\nv_mov_b32 v{V_T+2}, {L_MODE}\nv_mov_b32 v{V_T+3}, s25\nds_write_b32 v{V_T+2}, v{V_T+3}")
    a(f"v_cmp_gt_u32 vcc, 2048, v{V_T+4}")
    for r in range(4): a(f"v_cndmask_b32 v{V_E+r}, 0, v{V_E+r}, vcc")
    a(f"v_lshrrev_b32 v{V_T+6}, 1, v{V_L16}\nv_add_u32 v{V_T+7}, {L_ST1}, v{V_L16}\nv_add_u32 v{V_T+6}, {L_ST2}, v{V_T+6}\nds_write_b128 v{V_T+7}, v[{V_E}:{V_E+3}]\nds_write_b64 v{V_T+6}, v[{V_E+4}:{V_E+5}]\ns_waitcnt lgkmcnt(0)")

def set_dma_addr(a,shift,nS,base):
    a(f"s_and_b32 s24, s{S_W}, 3\ns_lshl_b32 s24, s24, 4\ns_add_u32 s24, s24, s{S_T0}\nv_add_u32 v{V_T}, s24, v{V_M}")
    if shift: a(f"v_add_u32 v{V_T}, s27, v{V_T}\nv_min_i32 v{V_T}, 2047, v{V_T}\nv_max_i32 v{V_T}, 0, v{V_T}")
    a(f"v_lshrrev_b32 v{V_T+1}, 4, v{V_T}\nv_mul_u32_u24 v{V_T+1}, {nS*1024}, v{V_T+1}\nv_and_b32 v{V_T}, 15, v{V_T}\nv_lshlrev_b32 v{V_T}, 4, v{V_T}\nv_add_u32 v{V_T+1}, v{V_T+1}, v{V_T}\nv_lshlrev_b32 v{V_T}, 8, v{V_GQ}\nv_add_u32 v{V_DA}, v{V_T+1}, v{V_T}")
    a(f"s_lshr_b32 s24, s{S_W}, 2\ns_lshl_b32 s24, s24, 10\ns_add_u32 s28, s24, {base}")

def epi_addr(a,nS,ntreg,dst):
    a(f"s_lshr_b32 s24, s{ntreg}, 1\ns_lshl_b32 s24, s24, 10\ns_and_b32 s25, s{ntreg}, 1\ns_lshl_b32 s25, s25, 3\ns_add_u32 s24, s24, s25\ns_mul_i32 s25, s{S_G}, {4*nS*1024}\ns_add_u32 s24, s24, s25\ns_add_u32 s{dst}, s24, 0")


def wave_prog(a,role):
    vm=VM(); M=role=='M'
    pf=Prof(a)
    st=(lambda: pf.stamp())
    st()
    a(f"s_mul_i32 s31, s{S_J}, 5\ns_add_u32 s31, s31, s{S_W}")
    iss,comp=rowstats(a,vm); iss()
    a(f"s_mul_i32 s37, s{S_J}, 14\ns_sub_u32 s24, s{S_J}, 4\ns_max_i32 s24, s24, 0\ns_sub_u32 s37, s37, s24")
    a(f"s_add_u32 s38, s37, s{S_W}\ns_add_u32 s39, s38, 8")
    a(f"s_mul_i32 s41, s38, 20480\ns_add_u32 s41, s41, {W3S}\ns_mul_i32 s42, s39, 20480\ns_add_u32 s42, s42, {W3S}")
    a(f"s_mul_i32 s49, s31, 20480\ns_add_u32 s49, s49, {W2S}\ns_mul_i32 s50, s31, {54*1024}\ns_add_u32 s50, s50, {W4S}")
    epi_addr(a,20,31,33)
    if M:
        a(f"s_mul_i32 s32, s31, 20480\ns_add_u32 s32, s32, {W1S}")
        a(f"s_lshl_b32 s24, s31, 6\nv_lshlrev_b32 v{V_T+13}, 4, v{V_GQ}\nv_add_u32 v{V_T+13}, s24, v{V_T+13}")
        for i,b in enumerate((V_GW,V_S1,V_C1)):
            a(f"s_mov_b32 s25, {b}\nbuffer_load_dwordx4 v[{V_VEC+4*i}:{V_VEC+4*i+3}], v{V_T+13}, s[8:11], s25 offen"); vm.issue()
    set_dma_addr(a,True,20,Y2)
    def post():
        if M:
            a(f"s_add_u32 s34, s33, {X2}")
            for mt in range(4):
                a(f"buffer_load_dwordx2 v[{V_X2P+2*mt}:{V_X2P+2*mt+1}], v{V_L16}, s[8:11], s34 offen\ns_add_u32 s34, s34, 20480"); vm.issue('x2')
        comp(); st()
    hooks={'post_issue':post,'single':1}
    if M: hooks['next_w']=mk_wissue(a,vm,1,20,[49],'w2')
    w1=mk_wissue(a,vm,1,20,[32],'w1') if M else None
    gemm(a,vm,'p1',20,1 if M else 0,M,20,28,hooks,w1,'w1',0)
    st()
    if role=='P': p1_statload(a,vm,st)
    a("s_barrier")
    global CUR
    lslow=a.lab()
    a(f"v_mov_b32 v{V_T+2}, {L_MODE}\nds_read_b32 v{V_T+2}, v{V_T+2}\ns_waitcnt lgkmcnt(0)\nv_readfirstlane_b32 s24, v{V_T+2}\ns_cmp_eq_u32 s24, {0 if FORCE!='slow' else 7}\ns_cbranch_scc1 {lslow}" if FORCE!='slow' else f"s_branch {lslow}")
    vm2=copy.deepcopy(vm)
    CUR=FAST; k0=pf.n
    wave_rest(a,role,vm,pf)
    a(f"{lslow}:")
    CUR=SAFE
    pf.n=k0
    wave_rest(a,role,vm2,pf)

def wave_rest(a,role,vm,pf):
    M=role=='M'
    st=(lambda: pf.stamp() if (M or pf.n<11) else None)
    if M:
        a(f"v_lshlrev_b32 v{V_T+14}, 4, v{V_M}\nv_add_u32 v{V_T+14}, {L_ST1}, v{V_T+14}")
        for mt in range(4): a(f"ds_read_b128 v[{V_E+4*mt}:{V_E+4*mt+3}], v{V_T+14} offset:{256*mt}")
        a(f"s_add_u32 s34, s33, {GA}\ns_waitcnt lgkmcnt(0)")
        for mt in range(4):
            S=V_E+4*mt; A_=V_ACC+4*mt
            for r in range(4): a(f"v_mul_f32 v{A_+r}, v{A_+r}, v{S}")
            for q in range(3):
                for r in range(4): a(f"v_fmac_f32 v{A_+r}, v{S+1+q}, v{V_VEC+4*q+r}")
            gelu4(a,[A_+r for r in range(4)],V_E+16)
            a(f"v_cvt_pk_bf16_f32 v{V_E+20+2*mt}, v{A_}, v{A_+1}\nv_cvt_pk_bf16_f32 v{V_E+21+2*mt}, v{A_+2}, v{A_+3}")
            a(f"buffer_store_dwordx2 v[{V_E+20+2*mt}:{V_E+21+2*mt}], v{V_L16}, s[8:11], s34 offen {CUR.st}\ns_add_u32 s34, s34, 20480"); vm.issue()
        for i,b in enumerate((V_G,V_SB,V_GB)):
            a(f"s_mov_b32 s25, {b}\nbuffer_load_dwordx4 v[{V_VEC+4*i}:{V_VEC+4*i+3}], v{V_T+13}, s[8:11], s25 offen"); vm.issue()
    st()
    a(f"s_lshl_b32 s35, s{S_G}, 5\ns_add_u32 s35, s35, {F_P}\ns_lshl_b32 s24, s{S_J}, 2\ns_add_u32 s36, s35, s24")
    setflag(a,36,1)
    set_dma_addr(a,False,20,GA)
    poll(a,35,8,1,1,CUR.fl)
    st()
    vm=VM()
    hooks={}
    if M:
        w2=mk_wissue(a,vm,1,20,[49],'w2'); vm.tag.update({('w2',s,0):0 for s in range(20)})
        def w3one(sp,t):
            Wr=V_W+4*(sp*2+t)
            a(f"s_add_u32 s23, s{41+t}, {sp*1024}\nbuffer_load_dwordx4 v[{Wr}:{Wr+3}], v{V_L16}, s[8:11], s23 offen"); vm.issue()
        def nw(s):
            w3one(s>>1,s&1)
            if s==19:
                for sp in (10,11):
                    for t in range(2): w3one(sp,t)
        hooks['next_w']=nw
    gemm(a,vm,'p2',20,1 if M else 0,M,20,28,hooks,w2 if M else None,'w2',20)
    st()
    def p3(nt,pst):
        DW=12
        vm=VM(); w3=mk_wissue(a,vm,nt,DW,[41,42],'w3')
        if not M:
            for s in range(DW): w3(s)
        if M:
            a(f"v_lshlrev_b32 v{V_T+14}, 3, v{V_M}\nv_add_u32 v{V_T+14}, {L_ST2}, v{V_T+14}")
            for mt in range(4): a(f"ds_read_b64 v[{V_E+2*mt}:{V_E+2*mt+1}], v{V_T+14} offset:{128*mt}")
            a(f"v_cmp_eq_u32 vcc, 0, v{V_M}\nv_mov_b32 v{V_T}, 0x3f803f80\nv_cndmask_b32 v{V_E+8}, 0, v{V_T}, vcc\nv_mov_b32 v{V_E+9}, v{V_E+8}\nv_cmp_eq_u32 vcc, 1, v{V_M}\ns_nop 1\nv_cndmask_b32 v{V_E+10}, 0, v{V_T}, vcc\nv_mov_b32 v{V_E+11}, v{V_E+10}")
            a(f"s_add_u32 s34, s33, {X1}")
            a(f"v_add_u32 v{V_T+15}, s{S_T0}, v{V_M}\nv_mul_u32_u24 v{V_T+15}, 320, v{V_T+15}\ns_lshl_b32 s24, s31, 3\ns_add_u32 s24, s24, {PSTAT}\ns_waitcnt lgkmcnt(0)")
            for mt in range(4):
                X=V_X1F+4*mt; A_=V_ACC+4*mt; P=V_E+12;
                unpack(a,X,X+1,V_X2P+2*mt); unpack(a,X+2,X+3,V_X2P+2*mt+1)
                for r in range(4): a(f"v_fma_f32 v{X+r}, v{X+r}, v{V_E+2*mt}, -v{V_E+2*mt+1}")
                for r in range(4): a(f"v_fma_f32 v{X+r}, v{X+r}, v{V_VEC+r}, v{V_VEC+4+r}")
                for r in range(4): a(f"v_add_f32 v{X+r}, v{X+r}, v{A_+r}")
                for r in range(4): a(f"v_mul_f32 v{A_+r}, v{X+r}, v{X+r}")
                P=V_E+12+4*(mt%2)
                a(f"v_cvt_pk_bf16_f32 v{P}, v{X}, v{X+1}\nv_cvt_pk_bf16_f32 v{P+1}, v{X+2}, v{X+3}\nv_cvt_pk_bf16_f32 v{P+2}, v{A_}, v{A_+1}\nv_cvt_pk_bf16_f32 v{P+3}, v{A_+2}, v{A_+3}")
                a(f"buffer_store_dwordx2 v[{P}:{P+1}], v{V_L16}, s[8:11], s34 offen {CUR.st}\ns_add_u32 s34, s34, 20480")
                D=V_E+20
                a(f"v_mfma_f32_16x16x32_bf16 v[{D}:{D+3}], v[{V_E+8}:{V_E+11}], v[{P}:{P+3}], 0")
                a(f"s_nop 7\ns_mov_b64 exec, 0xffff\nbuffer_store_dwordx2 v[{D}:{D+1}], v{V_T+15}, s[8:11], s24 offen {CUR.st}\ns_mov_b64 exec, -1\ns_add_u32 s24, s24, {16*320}")
        st()
        a(f"s_add_u32 s35, s35, 1024\ns_add_u32 s36, s36, 1024")
        setflag(a,36,1)
        set_dma_addr(a,False,20,X1)
        poll(a,35,8,1,2,CUR.fl)
        st()
        vm=VM(); w3=mk_wissue(a,vm,nt,DW,[41,42],'w3')
        vm.tag.update({('w3',s,t):0 for s in range(DW) for t in range(nt)})
        hooks={}
        C3=V_E+24
        def c3load():
            for t in range(nt):
                a(f"s_lshl_b32 s24, s{38+t}, 6\ns_add_u32 s24, s24, {V_C3}\nv_lshlrev_b32 v{V_T+2}, 4, v{V_GQ}\nbuffer_load_dwordx4 v[{C3+4*t}:{C3+4*t+3}], v{V_T+2}, s[8:11], s24 offen"); vm.issue('c3')
        hooks[('stage',4)]=c3load
        if pst:
            PB=176
            def pl():
                a(f"v_lshrrev_b32 v{V_T+2}, 4, v{V_L16}\nv_add_u32 v{V_T+2}, s{S_T0}, v{V_T+2}\nv_mul_u32_u24 v{V_T+2}, 320, v{V_T+2}\ns_mov_b32 s24, {PSTAT}")
                for i in range(20):
                    a(f"buffer_load_dwordx4 v[{PB+4*i}:{PB+4*i+3}], v{V_T+2}, s[8:11], s24 offen offset:{16*i} {CUR.ld}"); vm.issue('pst')
            hooks['post_issue']=pl
            def pr():
                vm.wait(a,'pst')
                for i in range(1,40):
                    a(f"v_add_f32 v{PB}, v{PB}, v{PB+2*i}\nv_add_f32 v{PB+1}, v{PB+1}, v{PB+2*i+1}")
                a(f"v_mul_f32 v{PB}, 0x3acccccd, v{PB}\nv_mul_f32 v{PB+1}, 0x3acccccd, v{PB+1}\nv_fma_f32 v{PB+1}, -v{PB}, v{PB}, v{PB+1}\nv_add_f32 v{PB+1}, 0x3727c5ac, v{PB+1}\nv_rsq_f32 v{PB+2}, v{PB+1}\nv_mul_f32 v{PB+3}, v{PB}, v{PB+2}\nv_sub_f32 v{PB+3}, 0, v{PB+3}")
                a(f"v_lshrrev_b32 v{V_T+2}, 1, v{V_L16}\nv_add_u32 v{V_T+2}, {L_ST3}, v{V_T+2}\nds_write_b64 v{V_T+2}, v[{PB+2}:{PB+3}]\ns_waitcnt lgkmcnt(0)")
            hooks[('stage',1)]=pr
        if M:
            def nw4(s):
                for k in (2*(s%12),2*(s%12)+1):
                    Wr=V_W+4*k
                    a(f"s_add_u32 s23, s50, {k*1024}\nbuffer_load_dwordx4 v[{Wr}:{Wr+3}], v{V_L16}, s[8:11], s23 offen"); vm.issue()
            hooks['next_w']=nw4
        gemm(a,vm,'p3',20,nt,True,DW,28,hooks,w3,'w3',DW)
        st()
        vm.wait(a,'c3')
        a(f"v_lshlrev_b32 v{V_T+14}, 3, v{V_M}\nv_add_u32 v{V_T+14}, {L_ST3}, v{V_T+14}")
        for mt in range(4): a(f"ds_read_b64 v[{V_E+2*mt}:{V_E+2*mt+1}], v{V_T+14} offset:{128*mt}")
        a("s_waitcnt lgkmcnt(0)")
        for t in range(nt):
            epi_addr(a,54,38+t,34); a(f"s_add_u32 s34, s34, {H3}")
            for mt in range(4):
                A_=V_ACC+16*t+4*mt
                for r in range(4): a(f"v_mul_f32 v{A_+r}, v{A_+r}, v{V_E+2*mt}")
                for r in range(4): a(f"v_fmac_f32 v{A_+r}, v{V_E+2*mt+1}, v{C3+4*t+r}")
                gelu4(a,[A_+r for r in range(4)],V_E+16)
                P=V_E+8+2*(mt%4)
                a(f"v_cvt_pk_bf16_f32 v{P}, v{A_}, v{A_+1}\nv_cvt_pk_bf16_f32 v{P+1}, v{A_+2}, v{A_+3}")
                a(f"buffer_store_dwordx2 v[{P}:{P+1}], v{V_L16}, s[8:11], s34 offen {CUR.st}\ns_add_u32 s34, s34, {54*1024}")
        st()
        a(f"s_add_u32 s35, s35, 1024\ns_add_u32 s36, s36, 1024")
        setflag(a,36,1)
    l1,l2=a.lab(),a.lab()
    if M: p3(2,False)
    elif role=='P': p3(1,True)
    else:
        a(f"s_cmp_eq_u32 s{S_W}, 5\ns_cselect_b32 s24, s{S_J}, 7\ns_cmp_lt_u32 s24, 4\ns_cbranch_scc0 {l1}")
        p3(2,False); a(f"s_branch {l2}\n{l1}:"); p3(1,False); a(f"{l2}:")
    set_dma_addr(a,False,54,H3)
    poll(a,35,8,1,3,CUR.fl)
    st()
    vm=VM()
    if M:
        w4=mk_wissue(a,vm,1,24,[50],'w4'); vm.tag.update({('w4',s,0):0 for s in range(24)})
    gemm(a,vm,'p4',54,1 if M else 0,M,24,28,{},w4 if M else None,'w4',24)
    st()
    if M:
        a(f"v_add_u32 v{V_T+15}, s{S_T0}, v{V_M}\nv_mul_u32_u24 v{V_T+15}, 1280, v{V_T+15}\nv_lshlrev_b32 v{V_T+14}, 3, v{V_GQ}\nv_add_u32 v{V_T+15}, v{V_T+15}, v{V_T+14}\ns_lshl_b32 s24, s31, 5")
        for mt in range(4):
            X=V_X1F+4*mt; A_=V_ACC+4*mt; F=V_E+4*(mt%2)
            unpack(a,F,F+1,V_X2P+2*mt); unpack(a,F+2,F+3,V_X2P+2*mt+1)
            for r in range(4): a(f"v_add_f32 v{A_+r}, v{A_+r}, v{X+r}")
            for r in range(4): a(f"v_fmac_f32 v{F+r}, v{A_+r}, v{V_VEC+8+r}")
            P=V_E+8+2*mt
            a(f"v_cvt_pk_bf16_f32 v{P}, v{F}, v{F+1}\nv_cvt_pk_bf16_f32 v{P+1}, v{F+2}, v{F+3}")
            a(f"buffer_store_dwordx2 v[{P}:{P+1}], v{V_T+15}, s[12:15], s24 offen\ns_add_u32 s24, s24, {16*1280}")
        st();
        if PROF: a("s_waitcnt vmcnt(0)"); st(); pf.dump(9,0)
    elif role=='S': pf.dump(9,16,5)
    else: pf.dump(9,32,7)
    a("s_endpgm")

def k3(a):
    n="mlp_kernel"
    a(f".p2align 8\n.type {n},@function\n{n}:")
    le,lh,lp=a.lab(),a.lab(),a.lab()
    a(f"s_cmp_ge_u32 s2, 256\ns_cbranch_scc1 {le}")
    srd(a,S_WS,'ws',WSZ); srd(a,S_OUT,'out',2048*640*2); Prof(a).init()
    a(f"s_and_b32 s24, s2, 7\ns_lshl_b32 s24, s24, 2\ns_bfe_u32 s25, s2, 0x20003\ns_add_u32 s{S_G}, s24, s25\ns_lshr_b32 s{S_J}, s2, 5\ns_lshl_b32 s{S_T0}, s{S_G}, 6")
    a(f"v_lshrrev_b32 v{V_T}, 6, v0\nv_and_b32 v{V_L16}, 63, v0\nv_readfirstlane_b32 s{S_W}, v{V_T}\nv_and_b32 v{V_M}, 15, v0\nv_bfe_u32 v{V_GQ}, v0, 4, 2\nv_lshlrev_b32 v{V_L16}, 4, v{V_L16}")
    a(f"v_mov_b32 v{V_LDSA}, v{V_L16}\nv_add_u32 v{V_LDSA+1}, 0x10000, v{V_L16}\ns_lshl_b32 s21, s{S_W}, 10")
    a(f"s_lshr_b32 s24, s{S_J}, 2\ns_add_u32 s24, s24, 1\ns_sub_u32 s25, 0, s24\ns_bitcmp1_b32 s{S_J}, 1\ns_cselect_b32 s27, s24, s25")
    a("s_getreg_b32 s43, hwreg(HW_REG_XCC_ID, 0, 4)\ns_add_u32 s43, s43, 1")
    a(f"s_mov_b32 s40, 0xbdd2d3e8\nv_mov_b32 v{V_T+17}, 0xc0135761\ns_waitcnt lgkmcnt(0)")
    a(f"s_cmp_ge_u32 s{S_W}, 5\ns_cbranch_scc1 {lh}")
    wave_prog(a,'M')
    a(f"{lh}:\ns_cmp_eq_u32 s{S_W}, 7\ns_cbranch_scc1 {lp}")
    wave_prog(a,'S')
    a(f"{lp}:")
    wave_prog(a,'P')
    a(f"{le}:\ns_endpgm")
    return [(n,256,512,LDS3,256,256)]
```

```python
import re
class Asm:
    def __init__(s): s.L=[]; s.uid=0
    def __call__(s, txt):
        for ln in txt.split('\n'):
            ln=ln.strip()
            if ln: s.L.append(ln)
    def lab(s, p='L'):
        s.uid+=1; return f"{p}_{s.uid}"
def v(a,n=1): return f"v{a}" if n==1 else f"v[{a}:{a+n-1}]"
def sr(a,n=1): return f"s{a}" if n==1 else f"s[{a}:{a+n-1}]"
RE=re.compile(r'\b([vas])(\d+)\b|\b([vas])\[(\d+):(\d+)\]')
def regs(op):
    out=set()
    for m in RE.finditer(op):
        if m.group(1): out.add((m.group(1),int(m.group(2))))
        else:
            for i in range(int(m.group(4)),int(m.group(5))+1): out.add((m.group(3),i))
    if re.search(r'\bvcc\b',op): out|={('s',106),('s',107)}
    if re.search(r'\bm0\b',op): out.add(('s',124))
    return out
TRANS=('v_exp_f32','v_log_f32','v_rcp_f32','v_rsq_f32','v_sqrt_f32','v_sin_f32','v_cos_f32')
def parse(ln):
    m=re.match(r'(\S+)\s*(.*)',ln); op=m.group(1); rest=m.group(2).split(';')[0]
    ops=[x.strip() for x in re.split(r',(?![^\[]*\])',rest)] if rest.strip() else []
    d=dict(op=op,w=set(),r=set(),kind='other')
    allr=set()
    for o in ops: allr|=regs(o)
    if op.startswith('v_mfma'):
        d['kind']='mfma'; d['w']=regs(ops[0]); d['r']=regs(ops[1])|regs(ops[2])|regs(ops[3]); d['c']=regs(ops[3]); d['p']=8 if '32x32' in op else 4
    elif op.startswith('v_cmp'):
        d['kind']='valu'; d['w']=regs(ops[0]) if not op.endswith('_e32') or True else set(); d['r']=set().union(*[regs(o) for o in ops[1:]])
        if op.startswith('v_cmpx'): d['w']|={('s',126)}
    elif op.startswith('v_'):
        d['kind']='valu'; d['w']=regs(ops[0]); d['r']=set().union(*[regs(o) for o in ops[1:]]) if len(ops)>1 else set()
        if op.startswith(('v_fmac','v_dot2c','v_writelane')) : d['r']|=d['w']
        if op.startswith('v_permlane') and 'swap' in op: d['w']|=regs(ops[1]); d['r']|=regs(ops[0])
        if op.startswith(('v_cndmask',)) and len(ops)==3: d['r']|={('s',106),('s',107)}
        if op.startswith(('v_add_co','v_addc_co','v_sub_co')): d['w']|=regs(ops[1])
        if 'dst_sel' in ln and 'UNUSED_PRESERVE' in ln: d['r']|=d['w']
    elif op.startswith(('buffer_','global_','ds_')):
        d['kind']='mem'
        isload=('load' in op or 'read' in op) and not re.search(r'\blds\b',rest) and '_lds_' not in op
        if isload: d['w']=regs(ops[0]); d['r']=set().union(*[regs(o) for o in ops[1:]])
        else: d['r']=allr
        if re.search(r'\blds\b',rest) or '_lds_' in op: d['r']=d['r']|{('s',124)}; d['dma']=1
        if ('store' in op and ('x4' in op or 'x3' in op)): d['bigst']=regs(ops[0]) if op.startswith('buffer') else regs(ops[1])
    elif op.startswith('s_'):
        d['kind']='salu'
        if op in('s_nop','s_waitcnt','s_barrier','s_endpgm','s_branch') or op.startswith('s_cbranch') or op.startswith('s_cmp') or op=='s_setprio': d['r']=allr
        else: d['w']=regs(ops[0]) if ops else set(); d['r']=set().union(*[regs(o) for o in ops[1:]]) if len(ops)>1 else set()
        if op=='s_nop': d['n']=int(ops[0])+1
    return d
def need(p,c):
    n=0; pw=p['w']; cr=c['r']; cw=c['w']
    vw={x for x in pw if x[0] in 'va'}; sw={x for x in pw if x[0]=='s'}
    if p['kind']=='valu':
        if vw&cr:
            if c['kind']=='mfma': n=max(n,2)
            if c['kind']=='valu':
                if p['op'].replace('_e32','').replace('_e64','') in TRANS: n=max(n,1)
                if 'dpp' in c['op'] or c.get('dpp'): n=max(n,2)
                if c['op'].startswith('v_permlane'): n=max(n,2)
                if c['op'].startswith(('v_readlane','v_readfirstlane')): n=max(n,1)
                if p.get('sdwa'): n=max(n,1)
        if sw&cr:
            if c['kind']=='mem': n=max(n,5)
            elif c['kind']=='valu': n=max(n,4 if c['op'].startswith(('v_readlane','v_writelane')) else 2)
        if ('s',126) in sw and c['kind'] in('valu','mfma'): n=max(n,5)
    if p['kind']=='mfma':
        D=pw
        if c['kind']=='mfma':
            if D&c['c'] and D!=c['c']: n=max(n,6 if p['p']==4 else 10)
            if D&(c['r']-c['c']) or (D&c['ab']): n=max(n,8 if p['p']==4 else 12)
        elif c['kind'] in('valu','mem'):
            if D&(cr|cw): n=max(n,8 if p['p']==4 else 12)
        if c['kind']=='valu' and p['c']&cw: n=max(n,3 if p['p']==4 else 7)
    if p.get('bigst') and c['kind']=='valu' and p['bigst']&cw: n=max(n,2)
    if p.get('bigst') and c['kind']=='mem' and p['bigst']&cw: n=max(n,1)
    if p['kind']=='salu' and ('s',124) in pw and c.get('dma'): n=max(n,1)
    if p['kind']=='salu' and ('s',126) in pw and c['kind'] in ('mfma',): n=max(n,0)
    return n
def pad(lines):
    out=[]; hist=[]
    for ln in lines:
        t=ln.split(';')[0].strip()
        if not t or t.startswith('.') :
            out.append(ln); continue
        if t.endswith(':'):
            out.append(ln); continue
        c=parse(t)
        if 'row_' in t or 'quad_perm' in t: c['dpp']=1
        if 'sdwa' in t or 'op_sel' in t: c['sdwa']=1
        if c['kind']=='mfma':
            ops=[x.strip() for x in re.split(r',(?![^\[]*\])',t.split(None,1)[1])]
            c['ab']=regs(ops[1])|regs(ops[2])
        req=0
        for p,d in hist: req=max(req,need(p,c)-d)
        if req>0:
            k=req
            while k>0:
                q=min(k,16); out.append(f"s_nop {q-1}"); k-=q
            hist=[(p,d+req) for p,d in hist]
        out.append(ln)
        adv=c.get('n',1)
        hist=[(p,d+adv) for p,d in hist if d+adv<14]
        hist.append((c,0))
    return out
import os
PROF=int(os.environ.get('PROF','0'))
class Prof:
    def __init__(s,a,base=56): s.a=a; s.n=0; s.base=base
    def init(s):
        if PROF: s.a("s_memrealtime s[94:95]\ns_load_dwordx2 s[96:97], s[0:1], 136\ns_mov_b32 s98, 256\ns_mov_b32 s99, 0x20000")
    def stamp(s):
        if PROF:
            s.a(f"s_memtime s[{s.base+2*s.n}:{s.base+2*s.n+1}]"); s.n+=1
    def dump(s,wg,slot0,wavesel=None):
        if not PROF: return
        a=s.a; l=a.lab()
        a(f"s_waitcnt lgkmcnt(0)\ns_cmp_lg_u32 s2, {wg}\ns_cbranch_scc1 {l}\nv_readfirstlane_b32 s54, v0\ns_lshr_b32 s54, s54, 6\ns_cmp_lg_u32 s54, {wavesel or 0}\ns_cbranch_scc1 {l}")
        for i in range(1,s.n):
            a(f"s_sub_u32 s{s.base+2*i}, s{s.base+2*i}, s{s.base}\nv_mov_b32 v250, s{s.base+2*i}\nv_mov_b32 v251, 0\nbuffer_store_dword v250, v251, s[96:99], 0 offen offset:{4*(slot0+i-1)}")
        if slot0==0:
            a("s_memrealtime s[92:93]\ns_waitcnt lgkmcnt(0)")
            for r,sl in ((94,14),(92,15)): a(f"v_mov_b32 v250, s{r}\nv_mov_b32 v251, 0\nbuffer_store_dword v250, v251, s[96:99], 0 offen offset:{4*sl}")
        a(f"s_waitcnt vmcnt(0)\n{l}:")
```

```python
from asmlib import *
import os
F1T=os.environ.get('F1T',''); F1K=os.environ.get('F1K',''); F2W=os.environ.get('F2W',''); F2X=os.environ.get('F2X','')
MODP=0x0; VEC=0x20000; FLAGS=0x28000; STAT=0x30000; PSTAT=0x40000
XT=0x100000; XNT=0x400000; KR=0x700000; X2=0xA00000; Y2=0xD00000; GA=0x1000000; X1=0x1300000; H3=0x1600000
W1S=0x1D00000; W2S=0x1E00000; W3S=0x1F00000; W4S=0x2200000
V_GW=VEC; V_S1=VEC+2560; V_C1=VEC+5120; V_C3=VEC+7680
V_G=VEC+0x4000; V_SB=V_G+2560; V_GB=V_G+5120; V_GAF=VEC+0x6000; V_SBAF=V_GAF+2560
WSZ=0x10000000
KOFF=dict(u=0,Are=8,Aim=16,Bre=24,Bim=32,Cre=40,Cim=48,ldt=56,Dsk=64,w1=80,w2=88,w3=96,w4=104,c=112,wmod=120,out=128,dbg=136,ws=144)
def srd(a,s,name,size):
    a(f"s_load_dwordx2 s[{s}:{s+1}], s[0:1], {KOFF[name]}\ns_mov_b32 s{s+2}, {size}\ns_mov_b32 s{s+3}, 0x20000")
def dppsum16(a,r):
    for k in (8,4,2,1): a(f"v_add_f32_dpp v{r}, v{r}, v{r} row_ror:{k} row_mask:0xf bank_mask:0xf")
def unpack(a,d0,d1,s):
    a(f"v_lshlrev_b32 v{d0}, 16, v{s}\nv_and_b32 v{d1}, 0xffff0000, v{s}")
def bfround(a,r):
    a(f"v_cvt_pk_bf16_f32 v{r}, v{r}, v{r}\nv_lshlrev_b32 v{r}, 16, v{r}")

def k1_transposer(a):
    RS=1312
    srd(a,8,'u',2621440); srd(a,12,'ws',WSZ)
    a("v_and_b32 v1, 63, v0\nv_lshrrev_b32 v2, 6, v0\nv_and_b32 v3, 15, v0\nv_bfe_u32 v4, v0, 4, 2")
    a("v_lshlrev_b32 v5, 3, v2\nv_add_u32 v5, v5, v4")
    a("s_lshl_b32 s4, s3, 5\ns_mul_i32 s4, s4, 1280")
    a("v_mul_u32_u24 v6, 1280, v5\nv_lshlrev_b32 v7, 4, v3\nv_add_u32 v6, v6, v7")
    a(f"v_mul_u32_u24 v8, {RS}, v5\nv_add_u32 v8, v8, v7")
    a("s_waitcnt lgkmcnt(0)")
    for p in range(2):
        for q in range(5):
            a(f"buffer_load_dwordx4 v[{16+20*p+4*q}:{19+20*p+4*q}], v6, s[8:11], s4 offen offset:{p*0+q*256}" if p==0 else
              f"buffer_load_dwordx4 v[{16+20*p+4*q}:{19+20*p+4*q}], v9, s[8:11], s4 offen offset:{q*256}")
        if p==0: a("v_add_u32 v9, 5120, v6")
    for p in range(2):
        a(f"s_waitcnt vmcnt({5*(1-p)})")
        for q in range(5):
            a(f"ds_write_b128 v8, v[{16+20*p+4*q}:{19+20*p+4*q}] offset:{p*4*RS+q*256}")
        F=64
        for i in range(20): unpack(a,F+2*i,F+2*i+1,16+20*p+i)
        a(f"v_add_f32 v10, v{F}, v{F+1}")
        for i in range(2,40): a(f"v_add_f32 v10, v10, v{F+i}")
        dppsum16(a,10)
        a("v_mul_f32 v10, 0x3acccccd, v10")
        for i in range(40): a(f"v_sub_f32 v{F+i}, v{F+i}, v10")
        a(f"v_mul_f32 v11, v{F}, v{F}")
        for i in range(1,40): a(f"v_fmac_f32 v11, v{F+i}, v{F+i}")
        dppsum16(a,11)
        a("v_mov_b32 v12, 0x3727c5ac\nv_fmac_f32 v12, 0x3acccccd, v11\nv_rsq_f32 v12, v12\nv_mul_f32 v13, v10, v12\nv_sub_f32 v13, 0, v13")
        a(f"v_lshlrev_b32 v14, 3, v5\nds_write_b64 v14, v[12:13] offset:{32*RS+p*32}")
    a("s_waitcnt lgkmcnt(0)\ns_barrier")
    a("v_bfe_u32 v5, v0, 2, 2\nv_lshlrev_b32 v6, 3, v4\nv_add_u32 v5, v5, v6")
    a(f"v_mul_u32_u24 v5, {RS}, v5\nv_and_b32 v6, 3, v0\nv_lshlrev_b32 v6, 3, v6\nv_add_u32 v5, v5, v6")
    a("v_lshlrev_b32 v6, 5, v2\nv_add_u32 v5, v5, v6")
    a(f"v_lshlrev_b32 v6, 6, v4\nds_read_b128 v[16:19], v6 offset:{32*RS}\nds_read_b128 v[20:23], v6 offset:{32*RS+16}\nds_read_b128 v[24:27], v6 offset:{32*RS+32}\nds_read_b128 v[28:31], v6 offset:{32*RS+48}")
    a("v_lshlrev_b32 v7, 4, v2\nv_add_u32 v7, v7, v3\nv_lshlrev_b32 v7, 12, v7\nv_lshlrev_b32 v6, 4, v4\nv_add_u32 v7, v7, v6")
    a(f"s_lshl_b32 s4, s3, 6\ns_add_u32 s5, s4, {XT}\ns_add_u32 s6, s4, {XNT}")
    for i in range(10):
        R=32+4*i
        a(f"ds_read_b64_tr_b16 v[{R}:{R+1}], v5 offset:{i*128}\nds_read_b64_tr_b16 v[{R+2}:{R+3}], v5 offset:{i*128+4*RS}")
    a("s_waitcnt lgkmcnt(0)")
    for i in range(10):
        R=32+4*i; F=80+ (i%2)*12
        a(f"buffer_store_dwordx4 v[{R}:{R+3}], v7, s[12:15], s5 offen {F1T}")
        for j in range(4): unpack(a,F+2*j,F+2*j+1,R+j)
        for j in range(8): a(f"v_fma_f32 v{F+j}, v{F+j}, v{16+2*j}, v{17+2*j}")
        for j in range(4): a(f"v_cvt_pk_bf16_f32 v{F+8+j}, v{F+2*j}, v{F+2*j+1}")
        a(f"buffer_store_dwordx4 v[{F+8}:{F+11}], v7, s[12:15], s6 offen {F1T}")
        a(f"s_add_u32 s5, s5, {64*4096}\ns_add_u32 s6, s6, {64*4096}")
    a("s_endpgm")

def k1_gemv(a):
    srd(a,8,'wmod',640*3840*2); srd(a,12,'ws',WSZ); srd(a,16,'c',1280)
    a("s_mul_i32 s4, s3, 4370\ns_lshr_b32 s4, s4, 16\ns_mul_i32 s5, s4, 15\ns_sub_u32 s5, s3, s5")
    a("v_and_b32 v1, 63, v0\nv_lshrrev_b32 v2, 6, v0\nv_readfirstlane_b32 s6, v2")
    a("s_mul_i32 s7, s4, 80\ns_mul_i32 s6, s6, 20\ns_add_u32 s7, s7, s6")
    a("v_min_u32 v3, 19, v1\nv_add_u32 v3, s7, v3\nv_lshlrev_b32 v3, 1, v3")
    a("s_mul_i32 s20, s7, 7680\ns_lshl_b32 s21, s5, 9\ns_add_u32 s20, s20, s21")
    a("v_lshlrev_b32 v4, 3, v1\ns_waitcnt lgkmcnt(0)")
    a("buffer_load_ushort v5, v3, s[16:19], 0 offen")
    for i in range(20):
        a(f"buffer_load_dwordx2 v[{16+2*i}:{17+2*i}], v4, s[8:11], s20 offen\ns_add_u32 s20, s20, 7680")
    a("s_waitcnt vmcnt(20)\nv_lshlrev_b32 v5, 16, v5\nv_mul_f32 v6, 0xbfb8aa3b, v5\nv_exp_f32 v6, v6\nv_add_f32 v6, 1.0, v6\nv_rcp_f32 v6, v6\nv_mul_f32 v5, v5, v6")
    bfround(a,5)
    for i in range(20): a(f"v_readlane_b32 s{24+i}, v5, {i}")
    for j in range(4): a(f"v_mov_b32 v{8+j}, 0")
    for i in range(20):
        a(f"s_waitcnt vmcnt({19-i})")
        unpack(a,60,61,16+2*i); unpack(a,62,63,17+2*i)
        for j in range(4): a(f"v_fmac_f32 v{8+j}, s{24+i}, v{60+j}")
    a("v_lshlrev_b32 v6, 10, v2\nv_lshlrev_b32 v7, 4, v1\nv_add_u32 v6, v6, v7\nds_write_b128 v6, v[8:11]\ns_waitcnt lgkmcnt(0)\ns_barrier")
    a("v_lshlrev_b32 v6, 2, v0\nds_read_b32 v8, v6\nds_read_b32 v9, v6 offset:1024\nds_read_b32 v10, v6 offset:2048\nds_read_b32 v11, v6 offset:3072")
    a(f"s_mul_i32 s20, s4, {3840*4}\ns_lshl_b32 s21, s5, 10\ns_add_u32 s20, s20, s21\ns_add_u32 s20, s20, {MODP}")
    a("s_waitcnt lgkmcnt(0)\nv_add_f32 v8, v8, v9\nv_add_f32 v10, v10, v11\nv_add_f32 v8, v8, v10\nbuffer_store_dword v8, v6, s[12:15], s20 offen\ns_endpgm")

def cexp(a,dr,di,scale,AR,AI,t0,t1):
    import struct
    sc="0x%08x"%struct.unpack('<I',struct.pack('<f',float(scale)))[0]
    a(f"v_mul_f32 v{t0}, {sc}, v{AR}\nv_mul_f32 v{t1}, {sc}, v{AI}\nv_exp_f32 v{t0}, v{t0}\nv_fract_f32 v{t1}, v{t1}\nv_cos_f32 v{dr}, v{t1}\nv_sin_f32 v{di}, v{t1}\nv_mul_f32 v{dr}, v{dr}, v{t0}\nv_mul_f32 v{di}, v{di}, v{t0}")
def cmul(a,d,x,y,t):
    a(f"v_pk_mul_f32 v[{t}:{t+1}], v[{x}:{x+1}], v[{y}:{y+1}] op_sel:[0,0] op_sel_hi:[0,1]")
    a(f"v_pk_fma_f32 v[{d}:{d+1}], v[{x}:{x+1}], v[{y+2}:{y+3}], v[{t}:{t+1}] op_sel:[1,0,0] op_sel_hi:[1,1,1]")
def k1_kgen(a):
    ES=272; EB=0; FB=33*ES; WS=FB+32*ES
    for i,(nm) in enumerate(['Are','Aim','Bre','Bim','Cre','Cim']): srd(a,8+4*i,nm,640*128*2)
    srd(a,32,'ldt',1280); srd(a,36,'ws',WSZ)
    pf=Prof(a); pf.init(); pf.stamp()
    a("v_and_b32 v1, 63, v0\nv_lshrrev_b32 v2, 6, v0\nv_readfirstlane_b32 s4, v2")
    a("s_lshr_b32 s5, s4, 1\ns_lshl_b32 s6, s2, 1\ns_add_u32 s5, s5, s6\ns_and_b32 s6, s4, 1")
    a("s_lshl_b32 s7, s5, 8\ns_lshl_b32 s40, s6, 7\ns_add_u32 s7, s7, s40\nv_lshlrev_b32 v3, 1, v1\nv_add_u32 v3, s7, v3")
    a("s_lshl_b32 s41, s5, 1\nv_mov_b32 v4, s41\ns_waitcnt lgkmcnt(0)")
    for i in range(6): a(f"buffer_load_ushort v{8+i}, v3, s[{8+4*i}:{11+4*i}], 0 offen")
    a("buffer_load_ushort v14, v4, s[32:35], 0 offen")
    a(f"s_mul_i32 s42, s4, {WS}\nv_lshlrev_b32 v5, 2, v1\nv_add_u32 v5, s42, v5")
    a("v_and_b32 v6, 15, v0\nv_bfe_u32 v7, v0, 4, 2")
    a("v_lshlrev_b32 v15, 4, v7\nv_add_u32 v15, s42, v15")
    for ct in range(2):
        a(f"v_add_u32 v16, {16*ct}, v6\nv_cvt_f32_u32 v17, v16")
        for sg in range(4):
            r=100+2*sg+ct
            if sg==0: a(f"v_mul_u32_u24 v{r}, {ES}, v16")
            else:
                a(f"v_mul_f32 v18, {['','0.5','0x3e800000','0x3e000000'][sg]}, v17\nv_rndne_f32 v18, v18\nv_cvt_u32_f32 v18, v18\nv_mul_u32_u24 v{r}, {ES<<sg}, v18")
            a(f"v_add_u32 v{r}, v{r}, v15")
    a(f"v_mul_u32_u24 v108, {ES}, v6\nv_add_u32 v108, v108, v15\nv_add_u32 v108, {FB}, v108")
    a("s_waitcnt vmcnt(0)"); pf.stamp()
    for i in range(7): a(f"v_lshlrev_b32 v{8+i}, 16, v{8+i}")
    a("v_mul_f32 v14, 0x3fb8aa3b, v14\nv_exp_f32 v14, v14"); bfround(a,14)
    a("v_mul_f32 v8, v8, v14\nv_mul_f32 v9, v9, v14\nv_mul_f32 v10, v10, v14\nv_mul_f32 v11, v11, v14")
    a("v_mul_f32 v8, 0x3fb8aa3b, v8\nv_mul_f32 v9, 0x3e22f983, v9")
    a("v_mul_f32 v20, v12, v10\nv_mul_f32 v21, v12, v11\nv_fma_f32 v20, -v13, v11, v20\nv_fma_f32 v21, v13, v10, v21\nv_sub_f32 v21, 0, v21")
    cexp(a,24,25,1,8,9,16,17); a("v_sub_f32 v26, 0, v25\nv_mov_b32 v27, v24")
    cexp(a,28,29,32,8,9,16,17); a("v_sub_f32 v29, 0, v29\nv_sub_f32 v30, 0, v29\nv_mov_b32 v31, v28")
    a("v_mov_b32 v32, 1.0\nv_mov_b32 v33, 0")
    cexp(a,34,35,16,8,9,16,17)
    a("v_mov_b32 v36, v20\nv_mov_b32 v37, v21")
    for k,(sc) in enumerate([512,1024,1536]):
        cexp(a,44,45,sc,8,9,16,17); a("v_sub_f32 v45, 0, v45\nv_sub_f32 v46, 0, v45\nv_mov_b32 v47, v44")
        cmul(a,38+2*k,20,44,16)
    pf.stamp()
    def step(ch,mult,row,base,t,last):
        a(f"v_cvt_pk_bf16_f32 v{t}, v{ch}, v{ch+1}")
        if not last: cmul(a,ch,ch,mult,t+2)
        a(f"ds_write_b32 v5, v{t} offset:{base+row*ES}")
    for i in range(17):
        if i<16: step(32,24,i,EB,48,i==15)
        step(34,24,16+i,EB,52,i==16)
        if i<16:
            step(36,28,i,FB,56,i==15); step(38,28,16+i,FB,60,i==15)
    a("s_waitcnt lgkmcnt(0)")
    def frg(dst,addr,st,off=0): a(f"ds_read_b128 v[{dst}:{dst+3}], v{addr} offset:{off+64*st}")
    pf.stamp()
    for r in range(112,152): a(f"v_mov_b32 v{r}, 0")
    def mf(acc,A,B): a(f"v_mfma_f32_16x16x32_bf16 v[{acc}:{acc+3}], v[{A}:{A+3}], v[{B}:{B+3}], v[{acc}:{acc+3}]")
    for st in range(4): frg(152+4*st,108,st); frg(168+4*st,108,st,16*ES)
    for idx,(sg,ct) in enumerate([(0,0),(0,1),(1,0),(1,1),(2,0),(2,1)]):
        R=184+16*(idx%2)
        for st in range(4): frg(R+4*st,100+2*sg+ct,st)
        a("s_waitcnt lgkmcnt(0)")
        acc=[112,116,120,124,128,132][idx]; Fb=152 if sg<2 else 168
        for st in range(4): mf(acc,R+4*st,Fb+4*st)
    pf.stamp()
    for i in range(16):
        step(40,28,i,FB,56,i==15); step(42,28,16+i,FB,60,i==15)
    a("s_waitcnt lgkmcnt(0)")
    for st in range(4): frg(152+4*st,108,st); frg(168+4*st,108,st,16*ES)
    for ct in range(2):
        R=184+16*ct
        for st in range(4): frg(R+4*st,106+ct,st)
    a("s_waitcnt lgkmcnt(0)")
    for ct in range(2):
        for st in range(4):
            mf(136+4*ct,184+16*ct+4*st,152+4*st); mf(144+4*ct,184+16*ct+4*st,168+4*st)
    pf.stamp()
    a("v_cmp_gt_u32 vcc, 8, v6")
    for j in range(8): a(f"v_cndmask_b32 v{120+j}, v{120+j}, v{112+j}, vcc")
    a(f"v_lshlrev_b32 v16, 4, v1\nv_add_u32 v16, s42, v16\nv_add_u32 v16, {FB}, v16")
    a(f"s_xor_b32 s43, s4, 1\ns_mul_i32 s43, s43, {WS}\nv_lshlrev_b32 v17, 4, v1\nv_add_u32 v17, s43, v17\nv_add_u32 v17, {FB}, v17")
    l1,l2=a.lab(),a.lab()
    a(f"s_cmp_eq_u32 s6, 0\ns_cbranch_scc1 {l1}")
    for j in range(16): a(f"v_mov_b32 v{152+j}, v{120+j}\nv_mov_b32 v{120+j}, v{136+j}")
    a(f"s_branch {l2}\n{l1}:")
    for j in range(16): a(f"v_mov_b32 v{152+j}, v{136+j}")
    a(f"{l2}:")
    for q in range(4): a(f"ds_write_b128 v16, v[{152+4*q}:{155+4*q}] offset:{1024*q}")
    a("s_waitcnt lgkmcnt(0)\ns_barrier")
    for q in range(4): a(f"ds_read_b128 v[{152+4*q}:{155+4*q}], v17 offset:{1024*q}")
    a("s_mul_i32 s44, s5, 4224\n" f"s_add_u32 s44, s44, {KR}\ns_lshl_b32 s45, s6, 11")
    a("v_lshlrev_b32 v18, 6, v6\nv_lshlrev_b32 v19, 3, v7\nv_add_u32 v18, v18, v19\nv_add_u32 v18, s45, v18\nv_sub_u32 v18, 4088, v18")
    a("v_subrev_u32 v19, 1056, v18")
    a("s_waitcnt lgkmcnt(0)")
    for j in range(16): a(f"v_add_f32 v{120+j}, v{120+j}, v{152+j}")
    for tt in range(2):
        for ct in range(2):
            R=120+8*tt+4*ct
            a(f"v_cvt_pk_bf16_f32 v{152+2*(2*tt+ct)}, v{R+3}, v{R+2}\nv_cvt_pk_bf16_f32 v{153+2*(2*tt+ct)}, v{R+1}, v{R}")
            off=1056-1024*tt-32*ct
            a(f"buffer_store_dwordx2 v[{152+2*(2*tt+ct)}:{153+2*(2*tt+ct)}], v19, s[36:39], s44 offen offset:{off} {F1K}")
    a("v_lshlrev_b32 v20, 3, v6\nv_add_u32 v20, 4096, v20\nv_mov_b32 v22, 0\nv_mov_b32 v23, 0\nbuffer_store_dwordx2 v[22:23], v20, s[36:39], s44 offen")
    pf.stamp(); pf.dump(5,0)
    a("s_endpgm")
    return WS*4

def k1(a,name):
    a(f".p2align 8\n.type {name},@function\n{name}:")
    lt,lg,le=a.lab(),a.lab(),a.lab()
    a(f"s_cmp_ge_u32 s2, 320\ns_cbranch_scc1 {lt}")
    lds=k1_kgen(a)
    a(f"{lt}:\ns_cmp_ge_u32 s2, 384\ns_cbranch_scc1 {lg}\ns_sub_u32 s3, s2, 320")
    k1_transposer(a)
    a(f"{lg}:\ns_cmp_ge_u32 s2, 504\ns_cbranch_scc1 {le}\ns_sub_u32 s3, s2, 384")
    k1_gemv(a)
    a(f"{le}:\ns_endpgm")
    return lds
```

```python
import sys
from asmlib import *
import k1 as K1, k2 as K2
NAME="adaLN_cond__ssm_conv_s4__mixer_s_mlp__prompt"
def desc(n,vg=256,acc=256,sg=102):
    return f""".amdhsa_kernel {n}
  .amdhsa_next_free_vgpr {vg}
  .amdhsa_next_free_sgpr {sg}
  .amdhsa_accum_offset {acc}
  .amdhsa_group_segment_fixed_size 0
  .amdhsa_kernarg_size 152
  .amdhsa_user_sgpr_count 2
  .amdhsa_user_sgpr_kernarg_segment_ptr 1
  .amdhsa_system_sgpr_workgroup_id_x 1
.end_amdhsa_kernel"""
def build(out, upto=99):
    a=Asm(); ks=[]
    n1=NAME+"_kernel"; l=K1.k1(a,n1); ks.append((n1,504,256,l,256,256))
    if upto>=2:
        n="conv_kernel"; l=K2.k2(a,n); ks.append((n,256,256,l,256,256))
    if upto>=3:
        import k3 as K3
        ks+=K3.k3(a)
    if PROF:
        L2=[]; kidx=-1
        for ln in a.L:
            if ln.startswith('.type'): kidx+=1
            if ln=='s_endpgm':
                L2+=f"s_load_dwordx2 s[96:97], s[0:1], 144;s_mov_b32 s98, 0x10000000;s_mov_b32 s99, 0x20000;s_memrealtime s[92:93];s_waitcnt lgkmcnt(0);s_mov_b64 exec, 1;v_lshrrev_b32 v250, 6, v0;v_and_b32 v250, 7, v250;s_lshl_b32 s94, s2, 3;v_add_u32 v251, s94, v250;v_lshlrev_b32 v251, 2, v251;v_mov_b32 v250, s92;s_mov_b32 s94, {0x2700000+kidx*0x10000};buffer_store_dword v250, v251, s[96:99], s94 offen;s_endpgm".split(';')
            else: L2.append(ln)
        a.L=L2
    body=pad(a.L)
    hdr=[f"; @launch kernel={n} grid=({g},1,1) block=({b},1,1) lds={l}" for n,g,b,l,_,_ in ks]
    txt="\n".join(hdr)+'\n.amdgcn_target "amdgcn-amd-amdhsa--gfx950"\n.text\n'+"".join(f".globl {k[0]}\n" for k in ks)
    txt+="\n".join(body)+'\n.section .rodata,"a"\n'+"".join(".p2align 6\n"+desc(k[0],k[4],k[5])+"\n" for k in ks)
    open(out,"w").write(txt)
    print(out,len(txt),"bytes",[(k[0][-14:],k[1],k[3]) for k in ks])
if __name__=="__main__":
    build(sys.argv[1], int(sys.argv[2]) if len(sys.argv)>2 else 99)
```
